```python
import torch

def _softmax(x, axis=-1):
    return torch.softmax(x, dim=axis)
def _gelu(x):
    return torch.nn.functional.gelu(x, approximate="tanh")
def _silu(x):
    return torch.nn.functional.silu(x)
def _sigmoid(x):
    return torch.sigmoid(x)
def _layernorm(x, axis=-1, eps=1e-5):
    m = x.mean(dim=axis, keepdim=True)
    v = x.var(dim=axis, keepdim=True, unbiased=False)
    return (x - m) / torch.sqrt(v + eps)
def _scatter_add(tgt, idx, src, axis=0):
    return tgt.clone().index_add_(axis, idx, src)
def _segment_sum(src, seg, n):
    out = torch.zeros((n,) + src.shape[1:], dtype=src.dtype)
    return out.index_add_(0, seg, src)
def _pad(x, pw):
    flat = tuple(v for pair in reversed(pw) for v in pair)
    return torch.nn.functional.pad(x, flat)

kernel_name = 'gated_mix__linear_kernel_hedgehog__mixer_s_mlp__prompt'

def setup_inputs():

    _w = (lambda a: (lambda t: t.to(torch.bfloat16) if t.is_floating_point() else t)(torch.as_tensor(a)))
    def _A_setup():
        B, S, D, H = 1, 2048, 448, 16
        Dh = D // H
        return {
            "x": _w((lambda *s: torch.randn(*s, dtype=torch.bfloat16) * 0.05)(B, S, D)),
            "wqkv": _w((lambda *s: torch.randn(*s, dtype=torch.bfloat16) * 1.6)(D, 3 * D)),
            "w_phi": _w((lambda *s: torch.randn(*s, dtype=torch.bfloat16) * 1.6)(H, Dh, Dh) * (Dh ** -0.5)),
            "wo": _w((lambda *s: torch.randn(*s, dtype=torch.bfloat16) * 0.1)(D, D)),
        }
    _A_in = _A_setup()

    def _B_setup():
        B, S, D, F = 1, 2048, 448, 1792
        return {
            "x":  _w((lambda *s: torch.randn(*s, dtype=torch.bfloat16) * 0.05)(B, S, D)),
            "w1": _w((lambda *s: torch.randn(*s, dtype=torch.bfloat16) * 0.4)(D, D) * (D ** -0.5)),
            "w2": _w((lambda *s: torch.randn(*s, dtype=torch.bfloat16) * 0.4)(D, D) * (D ** -0.5)),
            "w3": _w((lambda *s: torch.randn(*s, dtype=torch.bfloat16) * 0.4)(D, F) * (D ** -0.5)),
            "w4": _w((lambda *s: torch.randn(*s, dtype=torch.bfloat16) * 0.4)(F, D) * (F ** -0.5)),
        }
    _B_in = _B_setup()

    return {
        "A_x": _A_in["x"],
        "A_wqkv": _A_in["wqkv"],
        "A_w_phi": _A_in["w_phi"],
        "A_wo": _A_in["wo"],
        "B_x": _B_in["x"],
        "B_w1": _B_in["w1"],
        "B_w2": _B_in["w2"],
        "B_w3": _B_in["w3"],
        "B_w4": _B_in["w4"],
        "gate_w": _w((lambda *s: torch.randn(*s, dtype=torch.bfloat16) * 0.05)(448) * 16.0),
    }

def reference(A_x, A_wqkv, A_w_phi, A_wo, B_x, B_w1, B_w2, B_w3, B_w4, gate_w):
    def _A_ref(x, wqkv, w_phi, wo):
        B, S, D = x.shape
        H = 16; Dh = D // H
        qkv = (lambda x, *d: x.permute(*d))((x @ wqkv).reshape(B, S, 3, H, Dh), 2, 0, 3, 1, 4)
        q, k, v = qkv[0], qkv[1], qkv[2]
        pq = torch.einsum("bhsd,hdf->bhsf", q, w_phi)
        pk = torch.einsum("bhsd,hdf->bhsf", k, w_phi)
        phi_q = torch.concatenate([_softmax(pq, axis=-1), _softmax(-pq, axis=-1)], axis=-1)
        phi_k = torch.concatenate([_softmax(pk, axis=-1), _softmax(-pk, axis=-1)], axis=-1)
        kv = torch.einsum("bhsf,bhsd->bhfd", phi_k, v)
        z  = torch.einsum("bhsf->bhf", phi_k)
        num = torch.einsum("bhqf,bhfd->bhqd", phi_q, kv)
        den = torch.einsum("bhqf,bhf->bhq", phi_q, z)[..., None] + 1e-6
        o = num / den
        return (lambda x, *d: x.permute(*d))(o, 0, 2, 1, 3).reshape(B, S, D) @ wo

    def _B_ref(x, w1, w2, w3, w4):
        B, S, D = x.shape
        h = _gelu(_layernorm(x, axis=-1) @ w1)
        c = D // 4
        g0 = _pad(h[:, :, 0*c:1*c], ((0, 0), (1, 0), (0, 0)))[:, :S, :]
        g1 = _pad(h[:, :, 1*c:2*c], ((0, 0), (0, 1), (0, 0)))[:, 1:, :]
        g2 = _pad(h[:, :, 2*c:3*c], ((0, 0), (2, 0), (0, 0)))[:, :S, :]
        g3 = _pad(h[:, :, 3*c:   ], ((0, 0), (0, 2), (0, 0)))[:, 2:, :]
        hs = torch.concatenate([g0, g1, g2, g3], axis=-1) @ w2
        x1 = x + hs
        h2 = _gelu(_layernorm(x1, axis=-1) @ w3) @ w4
        return x1 + h2

    x = A_x
    g = _sigmoid((x * gate_w).sum(-1, keepdims=True))
    a = _A_ref(x, A_wqkv, A_w_phi, A_wo)
    b = _B_ref(x, B_w1, B_w2, B_w3, B_w4)
    return g * a + (1 - g) * b
```

```python
import re

TRANS = ("v_exp_f32", "v_rcp_f32", "v_rsq_f32", "v_sqrt_f32", "v_log_f32")

def regs_of(op):
    op = op.strip()
    if op.startswith("-"):
        op = op[1:]
    if op.startswith("|") and op.endswith("|"):
        op = op[1:-1]
    m = re.fullmatch(r"([vas])\[(\d+):(\d+)\]", op)
    if m:
        return [f"{m.group(1)}{i}" for i in range(int(m.group(2)), int(m.group(3)) + 1)]
    m = re.fullmatch(r"([vas])(\d+)", op)
    if m:
        return [op]
    if op == "vcc":
        return ["vcc"]
    if op == "exec":
        return ["exec"]
    if op == "m0":
        return ["m0"]
    return []

def R(kind, base, n=1):
    return f"{kind}{base}" if n == 1 else f"{kind}[{base}:{base+n-1}]"
def V(b, n=1): return R("v", b, n)
def A(b, n=1): return R("a", b, n)
def S(b, n=1): return R("s", b, n)

class Gen:
    def __init__(self):
        self.out = []
        self.reset()

    def reset(self):
        self.clock = 0
        self.wr = {}
        self.rdc = {}
        self.std = {}
        self.vmq = []
        self.lgq = []
        self.cond = None

    def snapshot(self):
        import copy
        return copy.deepcopy((self.clock, self.wr, self.rdc, self.std, self.vmq, self.lgq))

    def restore(self, snap):
        import copy
        (self.clock, self.wr, self.rdc, self.std, self.vmq, self.lgq) = copy.deepcopy(snap)

    def raw(self, text):
        self.out.append(text)

    def comment(self, text):
        self.out.append("; " + text)

    def _emit(self, text, states=1):
        self.out.append("    " + text)
        self.clock += states

    def nop(self, n):
        while n > 0:
            k = min(n, 8)
            self._emit(f"s_nop {k-1}", k)
            n -= k

    def waitcnt(self, vm=None, lg=None):
        parts = []
        if vm is not None:
            vm = min(vm, 63)
            if vm < len(self.vmq):
                parts.append(f"vmcnt({vm})")
                self.vmq = self.vmq[len(self.vmq) - vm:] if vm else []
        if lg is not None:
            if any(e[2] for e in self.lgq):
                lg = 0
            lg = min(lg, 15)
            if lg < len(self.lgq):
                parts.append(f"lgkmcnt({lg})")
                self.lgq = self.lgq[len(self.lgq) - lg:] if lg else []
        if parts:
            self._emit("s_waitcnt " + " ".join(parts))

    def wait_vm_tag(self, tag):
        idx = [i for i, e in enumerate(self.vmq) if e[0] == tag]
        if idx:
            self.waitcnt(vm=len(self.vmq) - 1 - idx[-1])

    def wait_lg_tag(self, tag):
        idx = [i for i, e in enumerate(self.lgq) if e[0] == tag]
        if idx:
            self.waitcnt(lg=len(self.lgq) - 1 - idx[-1])

    def wait_all(self):
        self.waitcnt(vm=0, lg=0)

    def barrier(self):
        self._emit("s_barrier")

    def flush_hazards(self):
        need = 0
        for r, (k, t) in self.wr.items():
            lat = {"mfma": 8, "valu": 2, "trans": 2, "dot": 3, "valu_s": 5, "salu_m0": 1}.get(k, 0)
            need = max(need, lat - (self.clock - t))
        for r, t in self.rdc.items():
            need = max(need, 3 - (self.clock - t))
        for r, t in self.std.items():
            need = max(need, 2 - (self.clock - t))
        if need > 0:
            self.nop(need)

    def label(self, name, flush=True):
        if flush:
            self.flush_hazards()
        self.out.append(f"{name}:")

    def branch(self, op, target, flush=True):
        if flush:
            self.flush_hazards()
        self._emit(f"{op} {target}")

    def cond_begin(self, op, target):
        self._emit(f"{op} {target}")
        self.cond = (self.clock, set(), target, len(self.vmq), len(self.lgq))

    def cond_end(self):
        t0, regs, target, nv, nl = self.cond
        assert nv == len(self.vmq) and nl == len(self.lgq), "waits/mem ops inside cond block"
        self.cond = None
        self.out.append(f"{target}:")
        self.clock = t0
        for r in regs:
            k, _ = self.wr[r]
            self.wr[r] = (k, t0)
        for r in list(self.rdc):
            self.rdc[r] = min(self.rdc[r], t0)

    def i(self, mn, *ops, mod="", tag=None):
        ops = [str(o) for o in ops]
        is_mfma = mn.startswith("v_mfma")
        is_valu = mn.startswith("v_") and not is_mfma
        is_ds = mn.startswith("ds_")
        is_vm = mn.startswith("buffer_") or mn.startswith("global_")
        is_smem = mn.startswith("s_load") or mn.startswith("s_mem")
        is_salu = mn.startswith("s_") and not is_smem
        lds_dma = is_vm and re.search(r"\blds\b", mod) is not None
        is_store = ("store" in mn) or mn.startswith("ds_write") or (mn.startswith(("ds_add", "ds_min", "ds_max")) and "rtn" not in mn)
        dst, src = [], []
        if is_store or lds_dma or mn.startswith("s_cmp") or mn.startswith("s_bitcmp"):
            for o in ops: src += regs_of(o)
        elif "permlane" in mn and "swap" in mn:
            for o in ops:
                dst += regs_of(o); src += regs_of(o)
        else:
            dst = regs_of(ops[0])
            for o in ops[1:]: src += regs_of(o)
            if mn.startswith("v_fmac") or mn.startswith("v_dot2c") or mn.startswith("v_pk_fmac") or "dpp" in mod and False:
                src += dst
        if lds_dma:
            src.append("m0")
        is_dpp = ("permlane" in mn) or ("row_" in mod) or ("quad_perm" in mod) or ("dpp" in mn)
        touched = set(dst) | set(src)
        need_vm = None
        for k, e in enumerate(self.vmq):
            if e[1] & touched:
                need_vm = len(self.vmq) - 1 - k
        need_lg = None
        for k, e in enumerate(self.lgq):
            if e[1] & touched:
                need_lg = len(self.lgq) - 1 - k
        if need_vm is not None or need_lg is not None:
            assert self.cond is None, f"wait needed inside cond block: {mn} {ops}"
            self.waitcnt(vm=need_vm, lg=need_lg)
        need = 0
        def req(r, lat):
            nonlocal need
            k, t = self.wr[r]
            need = max(need, lat - (self.clock - t))
        srcC = regs_of(ops[3]) if is_mfma else []
        for r in src:
            if r not in self.wr: continue
            k, t = self.wr[r]
            if k == "mfma":
                if is_mfma and r in srcC and r not in regs_of(ops[1]) + regs_of(ops[2]):
                    if regs_of(ops[3]) != self.wr_grp.get(r):
                        req(r, 8)
                else:
                    req(r, 8)
            elif k in ("valu", "trans", "dot"):
                if is_mfma: req(r, 2)
                if is_dpp: req(r, 2)
                if mn.startswith("v_readfirstlane") or mn.startswith("v_readlane"): req(r, 1)
                if k == "trans" and (is_valu or is_mfma): req(r, 1)
                if k == "trans" and (is_vm or is_ds): req(r, 1)
                if k == "dot":
                    same_chain = (self.wr_op.get(r) == mn and len(ops) >= 4 and r in regs_of(ops[3]) and r not in regs_of(ops[1]) + regs_of(ops[2]))
                    if not same_chain: req(r, 3)
            elif k == "valu_s":
                if is_vm: req(r, 5)
                elif is_valu or is_mfma: req(r, 2)
                elif is_salu: req(r, 1)
            elif k == "salu_m0":
                if lds_dma: req(r, 1)
        for r in dst:
            if r in self.wr and self.wr[r][0] == "mfma" and not (is_mfma and r in srcC):
                req(r, 8)
            if r in self.wr and self.wr[r][0] == "dot" and not is_vm and not is_ds and not (self.wr_op.get(r) == mn):
                req(r, 3)
            if is_valu and r in self.rdc:
                need = max(need, 3 - (self.clock - self.rdc[r]))
            if (is_valu or is_mfma) and r in self.std:
                need = max(need, 2 - (self.clock - self.std[r]))
        if need > 0:
            self.nop(need)
        text = mn + " " + ", ".join(ops) + ((" " + mod) if mod else "")
        self._emit(text)
        t = self.clock
        if is_mfma:
            for r in dst:
                self.wr[r] = ("mfma", t); self.wr_grp[r] = dst
            for r in srcC:
                if r not in dst: self.rdc[r] = t
        elif is_valu:
            kind = "trans" if mn in TRANS else ("dot" if mn.startswith("v_dot") else "valu")
            for r in dst:
                if r[0] in "va" and r not in ("vcc",):
                    self.wr[r] = (kind, t); self.wr_op[r] = mn
                else:
                    self.wr[r] = ("valu_s", t)
        elif is_salu:
            for r in dst:
                self.wr[r] = ("salu_m0" if r == "m0" else "salu", t)
        else:
            for r in dst:
                self.wr.pop(r, None)
        if self.cond is not None:
            assert not (is_vm or is_ds or is_smem)
            self.cond[1].update(r for r in dst if r in self.wr)
        if is_vm:
            self.vmq.append((tag, set(dst)))
            if is_store and ("x4" in mn or "x3" in mn):
                for r in regs_of(ops[0]): self.std[r] = t
        if is_ds:
            self.lgq.append((tag, set(dst), False))
        if is_smem:
            self.lgq.append((tag, set(dst), True))
    wr_grp = {}
    wr_op = {}

    def text(self):
        return "\n".join(self.out) + "\n"
```

```python
from asmlib import *
import struct

def f32(x):
    return "0x%08x" % struct.unpack("<I", struct.pack("<f", x))[0]

LOG2E = 1.4426950408889634
GC0 = -2.0 * 0.7978845608028654 * LOG2E
GC1 = GC0 * 0.044715

WS_H = 0
WS_PHIQ = 2 << 20
WS_KVP = 6 << 20
WS_KVF = 8 << 20
WS_ST = (8 << 20) + (256 << 10)
WS_CS3 = (8 << 20) + (768 << 10)
WS_X1 = 9 << 20
WS_H3 = 11 << 20
WS_O = 19 << 20

P_X, P_WQKV, P_PHI, P_WO, P_BX, P_W1, P_W2, P_W3, P_W4, P_GATE, P_OUT, P_DBG, P_WS = [16 + 2 * i for i in range(13)]

def load_args(g):
    g.i("s_load_dwordx16", S(16, 16), S(0, 2), "0")
    g.i("s_load_dwordx8", S(32, 8), S(0, 2), "64")
    g.i("s_load_dwordx2", S(40, 2), S(0, 2), "96")

def srd(g, d, p, off, size):
    if off:
        g.i("s_add_u32", S(d), S(p), hex(off))
        g.i("s_addc_u32", S(d + 1), S(p + 1), "0")
    else:
        g.i("s_mov_b32", S(d), S(p))
        g.i("s_mov_b32", S(d + 1), S(p + 1))
    g.i("s_mov_b32", S(d + 2), hex(size))
    g.i("s_mov_b32", S(d + 3), "0x20000")

def kernel_begin(g, name):
    g.reset()
    g.raw(f".globl {name}")
    g.raw(".p2align 8")
    g.raw(f".type {name},@function")
    g.raw(f"{name}:")

def kernel_desc(name, nv, acc_off, ns=102):
    return f""".amdhsa_kernel {name}
  .amdhsa_next_free_vgpr {nv}
  .amdhsa_next_free_sgpr {ns}
  .amdhsa_accum_offset {acc_off}
  .amdhsa_group_segment_fixed_size 0
  .amdhsa_kernarg_size 104
  .amdhsa_user_sgpr_count 2
  .amdhsa_user_sgpr_kernarg_segment_ptr 1
  .amdhsa_system_sgpr_workgroup_id_x 1
.end_amdhsa_kernel
"""

def allreduce4(g, x, t, op="v_add_f32"):
    g.i("v_mov_b32", V(t), V(x))
    g.i("v_permlane32_swap_b32", V(t), V(x))
    g.i(op, V(x), V(x), V(t))
    g.i("v_mov_b32", V(t), V(x))
    g.i("v_permlane16_swap_b32", V(t), V(x))
    g.i(op, V(x), V(x), V(t))

def round_bf16(g, x):
    g.i("v_cvt_pk_bf16_f32", V(x), V(x), V(x))
    g.i("v_lshlrev_b32", V(x), "16", V(x))

MFMA = "v_mfma_f32_16x16x32_bf16"

PROF = False
WS_PROF = 64 << 20
sSTAMP = 70
def stamp(g, idx):
    if PROF:
        g.i("s_memrealtime" if idx == 0 else "s_memtime", S(sSTAMP + 2 * idx, 2))
        if idx == 0:
            g.i("s_memtime", S(sSTAMP + 2 * 1, 2))

def prof_store(g, kidx, n):
    if not PROF:
        return
    g.waitcnt(lg=0)
    g.i("s_mov_b64", "exec", "-1")
    srd(g, 96, P_WS, WS_PROF, 16 << 20)
    g.i("s_lshl_b32", "s100", "s2", "2")
    g.i("s_add_u32", "s100", "s100", "s3")
    g.i("s_add_u32", "s100", "s100", str(kidx * 2048))
    g.i("s_lshl_b32", "s100", "s100", "6")
    g.i("v_mov_b32", "v1", "0")
    for i in range(n):
        g.i("v_mov_b32", "v2", S(sSTAMP + 2 * i))
        g.i("buffer_store_dword", "v2", "v1", S(96, 4), "s100", mod=f"offen offset:{4 * i}")
```

```python
from common import *
import common

GP = 1088
L_PHI = 112 * GP
L_ZERO = L_PHI + 7168
L_END = L_ZERO + 2048
K1_LDS = L_END

sWAVE, sRB, sCT = 3, 6, 7
sPITCH, sCOLB, sDELTA, sHEAD0, sSLOTM = 8, 9, 10, 11, 12
sSOFF, sSTEP = 13, 14
SRD_X, SRD_W, SRD_P, SRD_O = 44, 48, 52, 56
sONES = 60
sTMP = 62
vLANE, vM, vQ = 1, 3, 4
vXO = 10
vDMA, vTR0, vTR1, vPHI = 12, 13, 14, 15
XF = lambda rt, ks: 16 + (rt * 14 + ks) * 4
ACC = lambda rt, t: 128 + (rt * 7 + t) * 4
vST = 184
vONES = 188
WF = lambda buf, t: (buf * 7 + t) * 4
CS = lambda t: 56 + 4 * t
PF = lambda t, s: 84 + (t * 4 + s) * 4

def ids(g, nwg, endlabel):
    load_args(g)
    g.i("s_cmp_ge_u32", "s2", str(nwg))
    g.branch("s_cbranch_scc1", endlabel)
    stamp(g, 0)
    g.i("v_and_b32", V(vLANE), "63", "v0")
    g.i("v_lshrrev_b32", V(2), "6", "v0")
    g.i("v_readfirstlane_b32", S(sWAVE), V(2))
    g.i("s_and_b32", "s4", "s2", "7")
    g.i("s_lshr_b32", "s5", "s2", "3")
    g.i("s_lshr_b32", S(sRB), "s4", "1")
    g.i("s_lshl_b32", S(sRB), S(sRB), "2")
    g.i("s_lshr_b32", S(sTMP), "s5", "3")
    g.i("s_add_u32", S(sRB), S(sRB), S(sTMP))
    g.i("s_and_b32", S(sCT), "s4", "1")
    g.i("s_lshl_b32", S(sCT), S(sCT), "3")
    g.i("s_and_b32", S(sTMP), "s5", "7")
    g.i("s_add_u32", S(sCT), S(sCT), S(sTMP))
    g.i("v_and_b32", V(vM), "15", V(vLANE))
    g.i("v_lshrrev_b32", V(vQ), "4", V(vLANE))

def gemm_addr(g):
    g.i("s_lshl_b32", S(sTMP), S(sRB), "7")
    g.i("s_lshl_b32", S(sTMP + 1), S(sWAVE), "5")
    g.i("s_add_u32", S(sTMP), S(sTMP), S(sTMP + 1))
    g.i("v_add_u32", V(5), S(sTMP), V(vM))
    g.i("v_mul_u32_u24", V(5), "896", V(5))
    g.i("v_lshl_add_u32", V(vXO), V(vQ), "4", V(5))
    g.i("v_add_u32", V(vXO + 1), str(16 * 896), V(vXO))
    g.i("v_mul_u32_u24", V(5), "37", V(vLANE))
    g.i("v_lshrrev_b32", V(5), "9", V(5))
    g.i("v_mul_u32_u24", V(6), "14", V(5))
    g.i("v_sub_u32", V(6), V(vLANE), V(6))
    g.i("v_mul_lo_u32", V(7), V(5), S(sPITCH))
    g.i("v_lshl_add_u32", V(7), V(6), "4", V(7))
    g.i("v_add_u32", V(7), S(sCOLB), V(7))
    g.i("v_add_u32", V(8), S(sDELTA), V(7))
    g.i("v_cmp_lt_u32", "vcc", "6", V(6))
    g.i("v_cndmask_b32", V(7), V(7), V(8), "vcc")
    g.i("v_mov_b32", V(8), "0x80000000")
    g.i("v_cmp_lt_u32", "vcc", "55", V(vLANE))
    g.i("v_cndmask_b32", V(vDMA), V(7), V(8), "vcc")
    g.i("v_bfe_u32", V(5), V(vLANE), "2", "2")
    g.i("v_and_b32", V(6), "3", V(vLANE))
    g.i("v_mul_u32_u24", V(7), str(2 * GP), V(vQ))
    g.i("v_mad_u32_u24", V(7), V(5), V(9), V(7)) if False else None
    g.i("v_mul_u32_u24", V(8), "224", V(5))
    g.i("v_add_u32", V(7), V(7), V(8))
    g.i("v_mul_u32_u24", V(8), "56", V(6))
    g.i("v_add_u32", V(vTR0), V(7), V(8))
    g.i("v_add_u32", V(vTR1), str(56 * GP), V(vTR0))
    g.i("s_lshl_b32", S(sSTEP), S(sPITCH), "2")
    g.i("s_mul_i32", S(sSOFF), S(sSTEP), S(sWAVE))
    g.i("s_lshl_b32", S(sSTEP), S(sSTEP), "2")
    g.i("s_mul_i32", S(sTMP), S(sWAVE), str(GP))
    g.i("v_mov_b32", V(8), "0")
    g.i("v_mov_b32", V(9), "0")
    g.i("v_lshlrev_b32", V(7), "3", "v0")
    g.i("ds_write_b64", V(7), V(8, 2), mod=f"offset:{L_ZERO - 65536}") if False else None
    g.i("v_add_u32", V(7), str(L_ZERO), V(7))
    g.i("ds_write_b64", V(7), V(8, 2))

sSK, sKX, sWB = 15, 67, 68
PD = 3

def gemm_loads_init(g):
    g.i("s_mov_b32", "m0", S(sTMP))
    g.i("s_and_b32", S(sSK), "s5", "7")
    g.i("s_lshr_b32", S(sKX), "s5", "3")
    g.i("s_lshl_b32", S(sKX), S(sKX), "1")
    g.i("s_add_u32", S(sSK), S(sSK), S(sKX))
    g.i("s_sub_u32", S(sKX), S(sSK), "7")
    g.i("s_cmp_ge_u32", S(sSK), "7")
    g.i("s_cselect_b32", S(sSK), S(sKX), S(sSK))
    g.i("s_mov_b32", S(sWB), S(sSOFF))

def stage_loads(g, st):
    ops = []
    def head():
        g.i("s_lshl_b32", S(sKX), S(sSK), "7")
        g.i("s_lshl_b32", S(sSOFF), S(sSTEP), "2")
        g.i("s_mul_i32", S(sSOFF), S(sSOFF), S(sSK))
        g.i("s_add_u32", S(sSOFF), S(sSOFF), S(sWB))
        g.i("s_add_u32", S(sSK), S(sSK), "1")
        g.i("s_cmp_eq_u32", S(sSK), "7")
        g.i("s_cselect_b32", S(sSK), "0", S(sSK))
    def dma(j):
        def f():
            if j == 0: head()
            g.i("buffer_load_dwordx4", V(vDMA), S(SRD_W, 4), S(sSOFF), mod="offen lds", tag=f"st{st}")
            g.i("s_add_u32", "m0", "m0", str(4 * GP))
            if j < 3:
                g.i("s_add_u32", S(sSOFF), S(sSOFF), S(sSTEP))
        return f
    def xl(ks, rt):
        def f():
            g.i("buffer_load_dwordx4", V(XF(rt, ks), 4), V(vXO + rt), S(SRD_X, 4), S(sKX),
                mod=f"offen offset:{64 * (ks & 1)}", tag=f"st{st}")
        return f
    for j in range(4):
        ops.append(dma(j))
    for rt in range(2):
        for ks in (2 * st, 2 * st + 1):
            ops.append(xl(ks, rt))
    return ops

def gemm_loads(g):
    gemm_loads_init(g)
    for st in range(PD):
        for f in stage_loads(g, st):
            f()

def w_reads(ks):
    buf = ks & 1
    base = vTR0 if ks < 7 else vTR1
    k0 = ks if ks < 7 else ks - 7
    return [("ds_read_b64_tr_b16", A(WF(buf, t) + 2 * hf, 2), V(base), f"offset:{(8 * k0 + hf) * GP + 8 * t}")
            for t in range(7) for hf in range(2)]

SA = lambda rt: 196 + 8 * rt

def gemm_main(g, ln, pfx, after_first_barrier=None):
    stamp(g, 2)
    g.wait_vm_tag("st0")
    g.waitcnt(lg=0)
    g.barrier()
    stamp(g, 3)
    for r in w_reads(0):
        g.i(r[0], r[1], r[2], mod=r[3])
    if after_first_barrier:
        after_first_barrier()
    for ks in range(14):
        buf = ks & 1
        mf = [(t, rt) for t in range(7) for rt in range(2)]
        rd = w_reads(ks + 1) if ks < 13 else []
        lds = []
        if (ks & 1) == 0 and ks // 2 + PD < 7:
            lds = stage_loads(g, ks // 2 + PD)
        newstage = ks < 13 and (ks & 1) == 1
        nfirst = 6 if newstage else 0
        for n, (t, rt) in enumerate(mf):
            if newstage and n == nfirst:
                g.wait_vm_tag(f"st{(ks + 1) // 2}")
                g.barrier()
                if ks in (5, 11): stamp(g, 4 if ks == 5 else 5)
            g.i(MFMA, V(ACC(rt, t), 4), A(WF(buf, t), 4), V(XF(rt, ks), 4), "0" if ks == 0 else V(ACC(rt, t), 4))
            if n >= nfirst:
                left = len(mf) - n
                k = -(-len(rd) // left)
                for r in rd[:k]:
                    g.i(r[0], r[1], r[2], mod=r[3])
                rd = rd[k:]
            if lds and n >= 2:
                lds.pop(0)()
        assert not lds
        if ln:
            for rt in range(2):
                g.i(MFMA, A(SA(rt), 4), V(vONES, 4), V(XF(rt, ks), 4), "0" if ks == 0 else A(SA(rt), 4))
                g.i(MFMA, A(SA(rt) + 4, 4), V(XF(rt, ks), 4), V(XF(rt, ks), 4), "0" if ks == 0 else A(SA(rt) + 4, 4))
            g.i("s_cmp_eq_u32", S(sWAVE), str(ks & 3))
            g.cond_begin("s_cbranch_scc0", f"{pfx}_cs{ks}")
            for t in range(7):
                g.i(MFMA, A(CS(t), 4), A(WF(buf, t), 4), V(vONES, 4), "0" if ks < 4 else A(CS(t), 4))
            g.cond_end()
    stamp(g, 6)

def ln_setup(g):
    g.i("s_mov_b32", S(sONES), "0x3f803f80")
    for j in range(4):
        g.i("v_mov_b32", V(vONES + j), "0x3f803f80")

def ln_gelu_epilogue(g, srd_out, out_pitch):
    T = 16
    g.i("v_mul_u32_u24", V(T), "112", V(vQ))
    g.i("v_add_u32", V(T), str(L_ZERO), V(T))
    g.i("s_mov_b32", S(sTMP), "0x00010001")
    g.i("s_mov_b32", S(sTMP + 1), "0x00010001")
    g.i("s_mov_b64", "exec", S(sTMP, 2))
    for t in range(7):
        for r in range(4):
            g.i("ds_add_f32", V(T), A(CS(t) + r), mod=f"offset:{16 * t + 4 * r}")
    g.i("s_mov_b64", "exec", "-1")
    g.i("v_lshrrev_b32", V(T + 2), "2", V(vM))
    g.i("v_and_b32", V(T + 3), "3", V(vM))
    for rt in range(2):
        g.i("v_accvgpr_read_b32", V(vST + 2 * rt), A(SA(rt)))
        q2 = vST + 2 * rt + 1
        g.i("v_accvgpr_read_b32", V(q2), A(SA(rt) + 4))
        for r in range(1, 4):
            g.i("v_accvgpr_read_b32", V(T + 1), A(SA(rt) + 4 + r))
            g.i("v_cmp_eq_u32", "vcc", str(r), V(T + 3))
            g.i("v_cndmask_b32", V(q2), V(q2), V(T + 1), "vcc")
        g.i("v_cmp_eq_u32", "vcc", V(T + 2), V(vQ))
        g.i("v_cndmask_b32", V(q2), "0", V(q2), "vcc")
        allreduce4(g, q2, T + 1)
    MEAN, RS = 20, 24
    for rt in range(2):
        s, q2 = vST + 2 * rt, vST + 2 * rt + 1
        g.i("v_mul_f32", V(s), f32(1.0 / 448), V(s))
        g.i("v_mul_f32", V(q2), f32(1.0 / 448), V(q2))
        g.i("v_fma_f32", V(q2), "-" + V(s), V(s), V(q2))
        g.i("v_max_f32", V(q2), "0", V(q2))
        round_bf16(g, s)
        round_bf16(g, q2)
        g.i("v_add_f32", V(q2), f32(1e-5), V(q2))
        round_bf16(g, q2)
        g.i("v_sqrt_f32", V(q2), V(q2))
        round_bf16(g, q2)
        g.i("v_rcp_f32", V(RS + 2 * rt), V(q2))
        g.i("v_mul_f32", V(MEAN + 2 * rt), "-1.0", V(s))
        g.i("v_mov_b32", V(MEAN + 2 * rt + 1), V(MEAN + 2 * rt))
        g.i("v_mov_b32", V(RS + 2 * rt + 1), V(RS + 2 * rt))
    C0, C1, ONE = 28, 30, 32
    for r, c in ((C0, GC0), (C1, GC1), (ONE, 1.0)):
        g.i("v_mov_b32", V(r), f32(c))
        g.i("v_mov_b32", V(r + 1), f32(c))
    OO = 34
    g.i("s_lshl_b32", S(sTMP), S(sRB), "7")
    g.i("s_lshl_b32", S(sTMP + 1), S(sWAVE), "5")
    g.i("s_add_u32", S(sTMP), S(sTMP), S(sTMP + 1))
    g.i("v_add_u32", V(OO), S(sTMP), V(vM))
    g.i("v_mul_u32_u24", V(OO), str(out_pitch), V(OO))
    g.i("v_mul_u32_u24", V(OO + 1), "56", V(vQ))
    g.i("v_add3_u32", V(OO), V(OO), V(OO + 1), S(sCOLB))
    g.i("v_add_u32", V(OO + 1), str(16 * out_pitch), V(OO))
    g.waitcnt(lg=0)
    g.barrier()
    CSV = 36
    for t in range(7):
        g.i("ds_read_b128", V(CSV + 4 * t, 4), V(T), mod=f"offset:{16 * t}")
    W0 = 64
    for rt in range(2):
        U, Z, PK = 64, 92, 192 + 16 * rt
        for p in range(14):
            a = V(ACC(rt, 0) + 2 * p, 2)
            g.i("v_pk_fma_f32", V(U + 2 * p, 2), V(CSV + 2 * p, 2), V(MEAN + 2 * rt, 2), a)
        for p in range(14):
            g.i("v_pk_mul_f32", V(U + 2 * p, 2), V(U + 2 * p, 2), V(RS + 2 * rt, 2))
        for p in range(14):
            g.i("v_pk_mul_f32", V(Z + 2 * p, 2), V(U + 2 * p, 2), V(U + 2 * p, 2))
        for p in range(14):
            g.i("v_pk_fma_f32", V(Z + 2 * p, 2), V(Z + 2 * p, 2), V(C1, 2), V(C0, 2))
        for p in range(14):
            g.i("v_pk_mul_f32", V(Z + 2 * p, 2), V(Z + 2 * p, 2), V(U + 2 * p, 2))
        for e in range(28):
            g.i("v_exp_f32", V(Z + e), V(Z + e))
        for p in range(14):
            g.i("v_pk_add_f32", V(Z + 2 * p, 2), V(Z + 2 * p, 2), V(ONE, 2))
        for e in range(28):
            g.i("v_rcp_f32", V(Z + e), V(Z + e))
        for p in range(14):
            g.i("v_pk_mul_f32", V(U + 2 * p, 2), V(U + 2 * p, 2), V(Z + 2 * p, 2))
        for p in range(14):
            g.i("v_cvt_pk_bf16_f32", V(PK + p), V(U + 2 * p), V(U + 2 * p + 1))
        for c in range(3):
            g.i("buffer_store_dwordx4", V(PK + 4 * c, 4), V(OO + rt), S(srd_out, 4), "0", mod=f"offen offset:{16 * c}")
        g.i("buffer_store_dwordx2", V(PK + 12, 2), V(OO + rt), S(srd_out, 4), "0", mod="offen offset:48")

def feature_map(g, B, P, PKD, W):
    for s in range(4):
        for t in range(7):
            g.i(MFMA, V(P + 4 * t, 4), A(PF(t, s), 4), V(B + 4 * s, 4), "0" if s == 0 else V(P + 4 * t, 4))
    EP, EM = W, W + 28
    MX, MN, LP, LM, SP, SM = W + 56, W + 58, W + 60, W + 62, W + 64, W + 66
    for p in range(14):
        g.i("v_cvt_pk_bf16_f32", V(EP + p), V(P + 2 * p), V(P + 2 * p + 1))
    for p in range(14):
        g.i("v_lshlrev_b32", V(P + 2 * p), "16", V(EP + p))
        g.i("v_and_b32", V(P + 2 * p + 1), "0xffff0000", V(EP + p))
    g.i("v_max3_f32", V(MX), V(P), V(P + 1), V(P + 2))
    g.i("v_min3_f32", V(MN), V(P), V(P + 1), V(P + 2))
    for e in range(3, 27, 2):
        g.i("v_max3_f32", V(MX), V(MX), V(P + e), V(P + e + 1))
        g.i("v_min3_f32", V(MN), V(MN), V(P + e), V(P + e + 1))
    g.i("v_max_f32", V(MX), V(MX), V(P + 27))
    g.i("v_min_f32", V(MN), V(MN), V(P + 27))
    g.i("v_mul_f32", V(MX), f32(-LOG2E), V(MX))
    g.i("v_mul_f32", V(MN), f32(LOG2E), V(MN))
    g.i("v_mov_b32", V(MX + 1), V(MX))
    g.i("v_mov_b32", V(MN + 1), V(MN))
    g.i("v_mov_b32", V(LP), f32(LOG2E)); g.i("v_mov_b32", V(LP + 1), f32(LOG2E))
    g.i("v_mov_b32", V(LM), f32(-LOG2E)); g.i("v_mov_b32", V(LM + 1), f32(-LOG2E))
    for p in range(14):
        g.i("v_pk_fma_f32", V(EP + 2 * p, 2), V(P + 2 * p, 2), V(LP, 2), V(MX, 2))
        g.i("v_pk_fma_f32", V(EM + 2 * p, 2), V(P + 2 * p, 2), V(LM, 2), V(MN, 2))
    for e in range(56):
        g.i("v_exp_f32", V(EP + e), V(EP + e))
    g.i("v_pk_add_f32", V(SP, 2), V(EP, 2), V(EP + 2, 2))
    g.i("v_pk_add_f32", V(SM, 2), V(EM, 2), V(EM + 2, 2))
    for p in range(2, 14):
        g.i("v_pk_add_f32", V(SP, 2), V(SP, 2), V(EP + 2 * p, 2))
        g.i("v_pk_add_f32", V(SM, 2), V(SM, 2), V(EM + 2 * p, 2))
    g.i("v_add_f32", V(SP), V(SP), V(SP + 1))
    g.i("v_add_f32", V(SM), V(SM), V(SM + 1))
    g.i("v_rcp_f32", V(SP), V(SP))
    g.i("v_rcp_f32", V(SM), V(SM))
    g.i("v_mov_b32", V(SP + 1), V(SP))
    g.i("v_mov_b32", V(SM + 1), V(SM))
    for p in range(14):
        g.i("v_pk_mul_f32", V(EP + 2 * p, 2), V(EP + 2 * p, 2), V(SP, 2))
        g.i("v_pk_mul_f32", V(EM + 2 * p, 2), V(EM + 2 * p, 2), V(SM, 2))
    for p in range(28):
        g.i("v_cvt_pk_bf16_f32", V(PKD + p), V(EP + 2 * p), V(EP + 2 * p + 1))

L_PK = 0
L_VX = 36864

def k1(g, name):
    kernel_begin(g, name)
    END = name + "_end"
    ids(g, 256, END)
    g.i("s_mov_b32", S(sPITCH), "2688")
    g.i("s_mov_b32", S(sDELTA), "0")
    g.i("s_mul_i32", S(sCOLB), S(sCT), "224")
    g.i("s_lshl_b32", S(sHEAD0), S(sCT), "2")
    g.i("s_mov_b32", S(sSLOTM), "3")
    g.waitcnt(lg=0)
    srd(g, SRD_X, P_X, 0, 2048 * 896)
    srd(g, SRD_W, P_WQKV, 0, 448 * 2688)
    srd(g, SRD_P, P_PHI, 0, 16 * 1568)
    g.i("s_cmp_ge_u32", S(sCT), "12")
    g.branch("s_cbranch_scc1", name + "_w1")
    snap_w1 = g.snapshot()
    g.i("s_cmp_lt_u32", S(sCT), "4")
    g.branch("s_cbranch_scc1", name + "_qk")
    g.i("s_sub_u32", S(sTMP), S(sCT), "4")
    g.i("s_mul_i32", S(sCOLB), S(sTMP), "112")
    g.i("s_add_u32", S(sCOLB), S(sCOLB), "896")
    g.i("s_mov_b32", S(sDELTA), "784")
    g.i("s_lshl_b32", S(sHEAD0), S(sTMP), "1")
    g.i("s_mov_b32", S(sSLOTM), "1")
    g.label(name + "_qk")
    gemm_addr(g)
    g.i("s_mul_i32", S(sTMP + 1), S(sHEAD0), "1568")
    g.i("v_lshlrev_b32", V(5), "4", "v0")
    g.i("v_add_u32", V(5), S(sTMP + 1), V(5))
    g.i("s_lshl_b32", S(sTMP + 1), S(sWAVE), "10")
    g.i("s_add_u32", "m0", S(sTMP + 1), str(L_PHI))
    g.i("buffer_load_dwordx4", V(5), S(SRD_P, 4), "0", mod="offen lds", tag="st0")
    g.i("v_add_u32", V(5), "4096", V(5))
    g.i("s_add_u32", "m0", S(sTMP + 1), str(L_PHI + 4096))
    g.i("s_cmp_eq_u32", S(sWAVE), "3")
    g.branch("s_cbranch_scc1", name + "_nophi2")
    g.i("buffer_load_dwordx4", V(5), S(SRD_P, 4), "0", mod="offen lds", tag="st0")
    g.label(name + "_nophi2")
    g.i("v_and_b32", V(5), S(sSLOTM), V(vQ))
    g.i("v_mul_u32_u24", V(5), "1568", V(5))
    g.i("v_bfe_u32", V(6), V(vLANE), "2", "2")
    g.i("v_mul_u32_u24", V(6), "56", V(6))
    g.i("v_add3_u32", V(5), V(5), V(6), str(L_PHI)) if False else None
    g.i("v_add_u32", V(5), V(5), V(6))
    g.i("v_add_u32", V(5), str(L_PHI), V(5))
    g.i("v_mov_b32", V(6), str(L_ZERO))
    g.i("v_and_b32", V(7), "3", V(vLANE))
    g.i("v_cmp_eq_u32", "vcc", V(7), V(vQ))
    g.i("v_cndmask_b32", V(vPHI), V(6), V(5), "vcc")
    gemm_loads(g)
    g.i("v_mov_b32", V(5), "0")
    for t in range(7):
        g.i("v_accvgpr_write_b32", A(PF(t, 3) + 2), V(5))
        g.i("v_accvgpr_write_b32", A(PF(t, 3) + 3), V(5))
    def phi_reads():
        for t in range(7):
            for s in range(4):
                for hf in range(2):
                    if s == 3 and hf == 1: continue
                    g.i("ds_read_b64_tr_b16", A(PF(t, s) + 2 * hf, 2), V(vPHI), mod=f"offset:{(8 * s + 4 * hf) * 56 + 8 * t}")
    gemm_main(g, False, name + "a", phi_reads)
    g.i("s_cmp_lt_u32", S(sCT), "4")
    g.branch("s_cbranch_scc0", name + "_kv")
    snap_kv = g.snapshot()
    srd(g, SRD_O, P_WS, WS_PHIQ, 4 << 20)
    B, P, PKD, W = 16, 32, 192, 60
    OO = 8
    g.i("s_lshl_b32", S(sTMP), S(sRB), "3")
    g.i("s_lshl_b32", S(sTMP + 1), S(sWAVE), "1")
    g.i("s_add_u32", S(sTMP), S(sTMP), S(sTMP + 1))
    g.i("s_lshl_b32", S(sTMP), S(sTMP), "4")
    g.i("s_add_u32", S(sTMP), S(sTMP), S(sHEAD0))
    g.i("v_add_u32", V(OO), S(sTMP), V(vQ))
    g.i("v_lshlrev_b32", V(OO), "11", V(OO))
    g.i("v_lshl_add_u32", V(OO), V(vM), "4", V(OO))
    g.i("v_add_u32", V(OO + 1), str(16 * 2048), V(OO))
    g.i("v_mov_b32", V(B + 14), "0")
    g.i("v_mov_b32", V(B + 15), "0")
    for rt in range(2):
        for p in range(14):
            g.i("v_cvt_pk_bf16_f32", V(B + p), V(ACC(rt, 0) + 2 * p), V(ACC(rt, 0) + 2 * p + 1))
        feature_map(g, B, P, PKD + 28 * rt, W)
        for ci in range(7):
            g.i("buffer_store_dwordx4", V(PKD + 28 * rt + 4 * ci, 4), V(OO + rt), S(SRD_O, 4), "0", mod=f"offen offset:{256 * ci}")
    stamp(g, 7); prof_store(g, 0, 8)
    g.raw("    s_endpgm")
    g.restore(snap_kv)
    g.label(name + "_kv")
    srd(g, SRD_O, P_WS, WS_KVP, 2 << 20)
    B, P, PKD, W = 16, 32, 192, 60
    B2 = 224
    PV = 224
    for p in range(14):
        g.i("v_cvt_pk_bf16_f32", V(B + p), V(ACC(0, 0) + 2 * p), V(ACC(0, 0) + 2 * p + 1))
        g.i("v_cvt_pk_bf16_f32", V(B2 + p), V(ACC(1, 0) + 2 * p), V(ACC(1, 0) + 2 * p + 1))
    g.i("v_mov_b32", V(B + 14), "0")
    g.i("v_mov_b32", V(B + 15), "0")
    for p in range(14):
        g.i("v_permlane32_swap_b32", V(B + p), V(B2 + p))
    g.barrier()
    VO = 8
    g.i("s_lshl_b32", S(sTMP), S(sWAVE), "5")
    g.i("v_add_u32", V(VO), S(sTMP), V(vM))
    g.i("v_mul_u32_u24", V(VO), "80", V(VO))
    g.i("v_and_b32", V(VO + 1), "1", V(vQ))
    g.i("v_mul_u32_u24", V(VO + 1), "10240", V(VO + 1))
    g.i("v_add_u32", V(VO), V(VO), V(VO + 1))
    g.i("v_mov_b32", V(9), "1.0")
    for rt in range(2):
        PVr = PV + 16 * rt
        for c in range(4):
            vals = [V(ACC(rt, 0) + 7 * c + j) for j in range(7)] + [V(9)]
            for j in range(4):
                g.i("v_cvt_pk_bf16_f32", V(PVr + 4 * c + j), vals[2 * j], vals[2 * j + 1])
    g.i("s_mov_b32", S(sTMP), "0")
    g.i("s_mov_b32", S(sTMP + 1), "-1")
    g.i("s_mov_b64", "exec", S(sTMP, 2))
    for rt in range(2):
        for c in range(4):
            g.i("ds_write_b128", V(VO), V(PV + 16 * rt + 4 * c, 4), mod=f"offset:{L_VX + rt * 16 * 80 + 16 * c}")
    g.i("s_mov_b64", "exec", "-1")
    feature_map(g, B, P, PKD, W)
    KO = 8
    g.i("s_lshl_b32", S(sTMP), S(sWAVE), "5")
    g.i("v_lshrrev_b32", V(KO), "1", V(vQ))
    g.i("v_lshlrev_b32", V(KO), "4", V(KO))
    g.i("v_add3_u32", V(KO), V(KO), V(vM), S(sTMP))
    g.i("v_and_b32", V(KO + 1), "1", V(vQ))
    g.i("v_lshl_add_u32", V(KO), V(KO + 1), "7", V(KO))
    g.i("v_mul_u32_u24", V(KO), "144", V(KO))
    for ci in range(7):
        g.i("ds_write_b128", V(KO), V(PKD + 4 * ci, 4), mod=f"offset:{L_PK + 16 * ci}")
    RA, RB_ = 8, 9
    g.i("v_bfe_u32", V(5), V(vLANE), "2", "2")
    g.i("v_lshl_add_u32", V(5), V(vQ), "3", V(5))
    g.i("v_and_b32", V(6), "3", V(vLANE))
    g.i("s_lshr_b32", S(sTMP), S(sWAVE), "1")
    g.i("s_and_b32", S(sTMP + 1), S(sWAVE), "1")
    g.i("s_mul_i32", S(sTMP + 2), S(sTMP), str(128 * 144))
    g.i("s_mul_i32", S(sTMP + 3), S(sTMP), str(128 * 80))
    g.i("s_lshl_b32", S(sTMP + 4), S(sTMP + 1), "3")
    g.i("s_add_u32", S(sTMP + 3), S(sTMP + 3), S(sTMP + 4))
    g.i("v_mul_u32_u24", V(7), "144", V(5))
    g.i("v_lshl_add_u32", V(7), V(6), "4", V(7))
    g.i("v_add_u32", V(RA), S(sTMP + 2), V(7))
    g.i("v_mul_u32_u24", V(7), "80", V(5))
    g.i("v_lshl_add_u32", V(7), V(6), "4", V(7))
    g.i("v_add_u32", V(RB_), S(sTMP + 3), V(7))
    g.i("s_lshl_b32", S(sTMP + 2), S(sRB), "4")
    g.i("s_add_u32", S(sTMP + 2), S(sTMP + 2), S(sHEAD0))
    g.i("s_add_u32", S(sTMP + 2), S(sTMP + 2), S(sTMP))
    g.i("s_lshl_b32", S(sTMP + 2), S(sTMP + 2), "1")
    g.i("s_add_u32", S(sTMP + 2), S(sTMP + 2), S(sTMP + 1))
    g.i("s_lshl_b32", S(sTMP + 2), S(sTMP + 2), "12")
    g.i("v_lshlrev_b32", V(7), "5", V(vLANE))
    g.waitcnt(lg=0)
    g.barrier()
    VB, PA, KV = 16, 32, 96
    for ks in range(4):
        for hf in range(2):
            g.i("ds_read_b64_tr_b16", V(VB + 4 * ks + 2 * hf, 2), V(RB_), mod=f"offset:{L_VX + (32 * ks + 4 * hf) * 80}")
        for tf in range(4):
            for hf in range(2):
                g.i("ds_read_b64_tr_b16", V(PA + 16 * ks + 4 * tf + 2 * hf, 2), V(RA),
                    mod=f"offset:{L_PK + (32 * ks + 4 * hf) * 144 + 64 * (tf >> 1) + 8 * (tf & 1)}")
    for ks in range(4):
        for tf in range(4):
            g.i(MFMA, V(KV + 4 * tf, 4), V(PA + 16 * ks + 4 * tf, 4), V(VB + 4 * ks, 4), "0" if ks == 0 else V(KV + 4 * tf, 4))
    for tf in range(4):
        g.i("buffer_store_dwordx4", V(KV + 4 * tf, 4), V(7), S(SRD_O, 4), S(sTMP + 2), mod=f"offen offset:{2048 * (tf >> 1) + 16 * (tf & 1)}")
    stamp(g, 7); prof_store(g, 0, 8)
    g.raw("    s_endpgm")
    g.restore(snap_w1)
    g.label(name + "_w1")
    g.i("s_mov_b32", S(sPITCH), "896")
    g.i("s_sub_u32", S(sTMP), S(sCT), "12")
    g.i("s_mul_i32", S(sCOLB), S(sTMP), "224")
    srd(g, SRD_W, P_W1, 0, 448 * 896)
    srd(g, SRD_O, P_WS, WS_H, 2048 * 896)
    gemm_addr(g)
    ln_setup(g)
    gemm_loads(g)
    gemm_main(g, True, name + "b")
    ln_gelu_epilogue(g, SRD_O, 896)
    stamp(g, 7); prof_store(g, 0, 8)
    g.label(END)
    g.raw("    s_endpgm")
```

```python
from common import *
import common

GRID = 256
P8 = 1088
WREG = 16 * P8
LDS = 4 * WREG
NV, ACCOFF = 256, 256

sWAVE, sRB, sCT, sT = 3, 6, 7, 62
SRD_H, SRD_W, SRD_X, SRD_O = 44, 48, 52, 56
vLANE, vM, vQ = 1, 3, 4
vBO, vBO3, vDMA, vTR, vXO = 10, 14, 18, 19, 20
BF = lambda rt, ks: 32 + (rt * 4 + ks) * 4
WFR = lambda ks, t: 96 + (ks * 4 + t) * 4
ACC = lambda rt, t: 160 + (rt * 4 + t) * 4
XR = 224

def lane_ids(g):
    g.i("v_and_b32", V(vLANE), "63", "v0")
    g.i("v_lshrrev_b32", V(2), "6", "v0")
    g.i("v_readfirstlane_b32", S(sWAVE), V(2))
    g.i("v_and_b32", V(vM), "15", V(vLANE))
    g.i("v_lshrrev_b32", V(vQ), "4", V(vLANE))

def tile_ids(g):
    g.i("s_and_b32", "s4", "s2", "7")
    g.i("s_lshr_b32", "s5", "s2", "3")
    g.i("s_mul_i32", S(sT), "s5", "37")
    g.i("s_lshr_b32", S(sT), S(sT), "8")
    g.i("s_mul_i32", S(sT + 1), S(sT), "7")
    g.i("s_sub_u32", S(sCT), "s5", S(sT + 1))
    g.i("s_lshl_b32", S(sRB), "s4", "2")
    g.i("s_add_u32", S(sRB), S(sRB), S(sT))

def unpack(g, dst, src):
    g.i("v_lshlrev_b32", V(dst), "16", V(src))
    g.i("v_and_b32", V(dst + 1), "0xffff0000", V(src))

def k2(g, name):
    kernel_begin(g, name)
    END = name + "_end"
    load_args(g)
    g.i("s_cmp_ge_u32", "s2", str(GRID))
    g.branch("s_cbranch_scc1", END)
    stamp(g, 0)
    lane_ids(g)
    g.waitcnt(lg=0)
    g.i("s_cmp_ge_u32", "s2", "240")
    g.branch("s_cbranch_scc1", name + "_gate")
    snap_gate = g.snapshot()
    g.i("s_cmp_ge_u32", "s2", "224")
    g.branch("s_cbranch_scc1", name + "_red")
    snap_red = g.snapshot()
    tile_ids(g)
    srd(g, SRD_H, P_WS, WS_H, 2048 * 896)
    srd(g, SRD_W, P_W2, 0, 448 * 896)
    srd(g, SRD_X, P_X, 0, 2048 * 896)
    srd(g, SRD_O, P_WS, WS_X1, 2048 * 896)
    g.i("v_lshrrev_b32", V(5), "3", V(vLANE))
    g.i("s_mul_i32", S(sT), S(sWAVE), "112")
    g.i("v_add_u32", V(5), S(sT), V(5))
    g.i("v_mul_u32_u24", V(5), "896", V(5))
    g.i("v_and_b32", V(6), "7", V(vLANE))
    g.i("v_lshl_add_u32", V(5), V(6), "4", V(5))
    g.i("s_lshl_b32", S(sT + 1), S(sCT), "7")
    g.i("v_add_u32", V(vDMA), S(sT + 1), V(5))
    g.i("s_mul_i32", S(sT + 2), S(sWAVE), str(WREG))
    g.i("s_mov_b32", "m0", S(sT + 2))
    g.i("s_lshr_b32", S(sT + 3), S(sWAVE), "1")
    g.i("s_add_u32", S(sT + 3), S(sT + 3), "1")
    g.i("s_sub_u32", S(sT + 4), "0", S(sT + 3))
    g.i("s_bitcmp1_b32", S(sWAVE), "0")
    g.i("s_cselect_b32", S(sT + 3), S(sT + 3), S(sT + 4))
    g.i("s_lshl_b32", S(sT + 4), S(sRB), "6")
    g.i("s_add_u32", S(sT + 3), S(sT + 3), S(sT + 4))
    g.i("v_add_u32", V(5), S(sT + 3), V(vM))
    g.i("v_mov_b32", V(6), "896")
    g.i("v_mul_lo_u32", V(5), V(5), V(6))
    g.i("s_mul_i32", S(sT + 3), S(sWAVE), "224")
    g.i("v_lshl_add_u32", V(5), V(vQ), "4", V(5))
    g.i("v_add_u32", V(vBO), S(sT + 3), V(5))
    for rt in range(1, 4):
        g.i("v_add_u32", V(vBO + rt), str(rt * 16 * 896), V(vBO))
    g.i("v_mov_b32", V(6), "0x7f000000")
    g.i("v_cmp_lt_u32", "vcc", "1", V(vQ))
    for rt in range(4):
        g.i("v_cndmask_b32", V(vBO3 + rt), V(vBO + rt), V(6), "vcc")
    for ks in range(4):
        for j in range(4):
            i = 4 * ks + j
            g.i("buffer_load_dwordx4", V(vDMA), S(SRD_W, 4), "0", mod="offen lds", tag=f"w{ks}")
            if i < 15:
                g.i("s_add_u32", "m0", "m0", str(P8))
                g.i("v_add_u32", V(vDMA), str(8 * 896), V(vDMA))
        for rt in range(4):
            g.i("buffer_load_dwordx4", V(BF(rt, ks), 4), V((vBO3 if ks == 3 else vBO) + rt), S(SRD_H, 4), "0", mod=f"offen offset:{64 * ks}")
    g.i("s_lshl_b32", S(sT + 3), S(sWAVE), "4")
    g.i("s_add_u32", S(sT + 3), S(sT + 3), S(sT + 4))
    g.i("v_add_u32", V(5), S(sT + 3), V(vM))
    g.i("v_mul_u32_u24", V(5), "896", V(5))
    g.i("v_lshl_add_u32", V(5), V(vQ), "4", V(5))
    g.i("v_add_u32", V(vXO), S(sT + 1), V(5))
    for p in range(2):
        g.i("buffer_load_dwordx4", V(XR + 4 * p, 4), V(vXO), S(SRD_X, 4), "0", mod=f"offen offset:{64 * p}")
    g.i("v_bfe_u32", V(5), V(vLANE), "2", "2")
    g.i("v_and_b32", V(6), "3", V(vLANE))
    g.i("v_mul_u32_u24", V(7), str(P8), V(vQ))
    g.i("v_lshl_add_u32", V(7), V(5), "7", V(7))
    g.i("v_lshl_add_u32", V(7), V(6), "4", V(7))
    g.i("v_add_u32", V(vTR), S(sT + 2), V(7))
    stamp(g, 2)
    for ks in range(4):
        g.wait_vm_tag(f"w{ks}")
        for t in range(4):
            for hf in range(2):
                g.i("ds_read_b64_tr_b16", V(WFR(ks, t) + 2 * hf, 2), V(vTR), mod=f"offset:{4 * ks * P8 + 512 * hf + 64 * (t >> 1) + 8 * (t & 1)}")
        for t in range(4):
            for rt in range(4):
                g.i(MFMA, V(ACC(rt, t), 4), V(WFR(ks, t), 4), V(BF(rt, ks), 4), "0" if ks == 0 else V(ACC(rt, t), 4))
    stamp(g, 3)
    g.barrier()
    g.i("v_lshlrev_b32", V(5), "4", V(vLANE))
    g.i("s_lshl_b32", S(sT + 3), S(sWAVE), "12")
    g.i("v_add_u32", V(6), S(sT + 3), V(5))
    for rt in range(4):
        for t in range(4):
            g.i("ds_write_b128", V(6), V(ACC(rt, t), 4), mod=f"offset:{rt * 16384 + t * 1024}")
    g.i("s_lshl_b32", S(sT + 3), S(sWAVE), "14")
    g.i("v_add_u32", V(7), S(sT + 3), V(5))
    g.waitcnt(lg=0)
    g.barrier()
    RD = 32
    for s in range(4):
        for t in range(4):
            g.i("ds_read_b128", V(RD + (s * 4 + t) * 4, 4), V(7), mod=f"offset:{s * 4096 + t * 1024}")
    XU = 96
    for j in range(8):
        unpack(g, XU + 2 * j, XR + j)
    for j in range(8):
        g.i("v_pk_add_f32", V(RD + 2 * j, 2), V(RD + 2 * j, 2), V(RD + 16 + 2 * j, 2))
        g.i("v_pk_add_f32", V(RD + 32 + 2 * j, 2), V(RD + 32 + 2 * j, 2), V(RD + 48 + 2 * j, 2))
    for j in range(8):
        g.i("v_pk_add_f32", V(RD + 2 * j, 2), V(RD + 2 * j, 2), V(RD + 32 + 2 * j, 2))
    PKR = 112
    for j in range(8):
        g.i("v_cvt_pk_bf16_f32", V(PKR + j), V(RD + 2 * j), V(RD + 2 * j + 1))
    for j in range(8):
        unpack(g, RD + 2 * j, PKR + j)
    for j in range(8):
        g.i("v_pk_add_f32", V(RD + 2 * j, 2), V(RD + 2 * j, 2), V(XU + 2 * j, 2))
    for j in range(8):
        g.i("v_cvt_pk_bf16_f32", V(PKR + j), V(RD + 2 * j), V(RD + 2 * j + 1))
    for p in range(2):
        g.i("buffer_store_dwordx4", V(PKR + 4 * p, 4), V(vXO), S(SRD_O, 4), "0", mod=f"offen offset:{64 * p}")
    stamp(g, 4); prof_store(g, 1, 5)
    g.raw("    s_endpgm")
    g.restore(snap_red)
    g.label(name + "_red")
    srd(g, SRD_H, P_WS, WS_KVP, 2 << 20)
    srd(g, SRD_O, P_WS, WS_KVF, 64 << 10)
    g.i("s_sub_u32", S(sT), "s2", "224")
    g.i("s_lshl_b32", S(sT), S(sT), "2")
    g.i("s_add_u32", S(sT), S(sT), S(sWAVE))
    g.i("s_lshl_b32", S(sT + 1), S(sT), "11")
    g.i("v_lshlrev_b32", V(5), "5", V(vLANE))
    for rb in range(16):
        for h in range(2):
            g.i("buffer_load_dwordx4", V(32 + 8 * rb + 4 * h, 4), V(5), S(SRD_H, 4), S(sT + 1), mod=f"offen offset:{16 * h}")
        if rb < 15:
            g.i("s_add_u32", S(sT + 1), S(sT + 1), str(131072))
    step = 8
    n = 16
    while n > 1:
        for i in range(0, n, 2):
            for j in range(4):
                a = 32 + step * i + 2 * j
                g.i("v_pk_add_f32", V(a, 2), V(a, 2), V(a + step, 2))
        n //= 2
        step *= 2
    for j in range(4):
        g.i("v_cvt_pk_bf16_f32", V(8 + j), V(32 + 2 * j), V(33 + 2 * j))
    g.i("s_and_b32", S(sT + 2), S(sWAVE), "1")
    g.i("s_mul_i32", S(sT + 2), S(sT + 2), "3")
    g.i("s_add_u32", S(sT + 2), S(sT + 2), "0")
    g.i("v_mov_b32", V(6), "7")
    g.i("s_cmp_eq_u32", S(sT + 2), "3")
    g.i("s_cselect_b32", S(sT + 2), "3", "7")
    g.i("v_cmp_eq_u32", "vcc", S(sT + 2), V(vQ))
    for j in range(4):
        g.i("v_cndmask_b32", V(8 + j), V(8 + j), "0", "vcc")
    g.i("s_lshl_b32", S(sT + 1), S(sT), "10")
    g.i("v_lshlrev_b32", V(5), "4", V(vLANE))
    g.i("buffer_store_dwordx4", V(8, 4), V(5), S(SRD_O, 4), S(sT + 1), mod="offen")
    stamp(g, 2); prof_store(g, 1, 3)
    g.raw("    s_endpgm")
    g.restore(snap_gate)
    g.label(name + "_gate")
    srd(g, SRD_X, P_X, 0, 2048 * 896)
    srd(g, SRD_W, P_GATE, 0, 896)
    srd(g, SRD_O, P_WS, WS_G, 8192)
    g.i("s_sub_u32", S(sT), "s2", "240")
    g.i("s_lshl_b32", S(sT), S(sT), "7")
    g.i("s_lshl_b32", S(sT + 1), S(sWAVE), "5")
    g.i("s_add_u32", S(sT), S(sT), S(sT + 1))
    g.i("v_add_u32", V(8), S(sT), V(vM))
    g.i("v_mul_u32_u24", V(5), "896", V(8))
    g.i("v_lshl_add_u32", V(5), V(vQ), "4", V(5))
    g.i("v_add_u32", V(6), str(16 * 896), V(5))
    g.i("v_lshlrev_b32", V(7), "4", V(vQ))
    GW, XA = 16, 72
    for ks in range(14):
        g.i("buffer_load_dwordx4", V(GW + 4 * ks, 4), V(7), S(SRD_W, 4), "0", mod=f"offen offset:{64 * ks}")
        for rt in range(2):
            g.i("buffer_load_dwordx4", V(XA + 56 * rt + 4 * ks, 4), V(5 + rt), S(SRD_X, 4), "0", mod=f"offen offset:{64 * ks}")
    for i in range(56):
        for rt in range(2):
            g.i("v_dot2_f32_bf16", V(10 + rt), V(XA + 56 * rt + i), V(GW + i), "0" if i == 0 else V(10 + rt))
    for rt in range(2):
        z = 10 + rt
        allreduce4(g, z, 12)
        round_bf16(g, z)
        g.i("v_mul_f32", V(z), f32(-LOG2E), V(z))
        g.i("v_exp_f32", V(z), V(z))
        g.i("v_add_f32", V(z), "1.0", V(z))
        g.i("v_rcp_f32", V(z), V(z))
        round_bf16(g, z)
    g.i("v_lshlrev_b32", V(8), "2", V(8))
    g.i("buffer_store_dword", V(10), V(8), S(SRD_O, 4), "0", mod="offen")
    g.i("buffer_store_dword", V(11), V(8), S(SRD_O, 4), "0", mod="offen offset:64")
    stamp(g, 2); prof_store(g, 1, 3)
    g.label(END)
    g.raw("    s_endpgm")
```

```python
from common import *
import common

from k1 import *

LDS = K1_LDS
SRD_Q, SRD_KV, SRD_OO = 52, 64 + 24, 64 + 28

def k3(g, name):
    kernel_begin(g, name)
    END = name + "_end"
    ids(g, 256, END)
    g.i("s_mov_b32", S(sPITCH), "3584")
    g.i("s_mov_b32", S(sDELTA), "0")
    g.i("s_mul_i32", S(sCOLB), S(sCT), "224")
    g.waitcnt(lg=0)
    srd(g, SRD_X, P_WS, WS_X1, 2048 * 896)
    srd(g, SRD_W, P_W3, 0, 448 * 3584)
    srd(g, SRD_O, P_WS, WS_H3, 2048 * 3584)
    srd(g, SRD_Q, P_WS, WS_PHIQ, 4 << 20)
    srd(g, SRD_KV, P_WS, WS_KVF, 64 << 10)
    srd(g, SRD_OO, P_WS, WS_O, 2 << 20)
    gemm_addr(g)
    ln_setup(g)
    gemm_loads(g)
    KF = lambda td, p: 100 + 4 * (2 * td + p)
    QF = lambda rt, p: 116 + 4 * (2 * rt + p)
    vO1, vO2, vO3 = 5, 6, 7
    g.i("v_lshlrev_b32", V(vO1), "4", V(vLANE))
    g.i("s_lshl_b32", S(sTMP), S(sCT), "12")
    for td in range(2):
        for p in range(2):
            g.i("buffer_load_dwordx4", A(KF(td, p), 4), V(vO1), S(SRD_KV, 4), S(sTMP), mod=f"offen offset:{1024 * (2 * td + p)}", tag="oj")
    g.i("s_lshl_b32", S(sTMP + 1), S(sRB), "3")
    g.i("s_lshl_b32", S(sTMP + 2), S(sWAVE), "1")
    g.i("s_add_u32", S(sTMP + 1), S(sTMP + 1), S(sTMP + 2))
    g.i("s_lshl_b32", S(sTMP + 1), S(sTMP + 1), "4")
    g.i("s_add_u32", S(sTMP + 1), S(sTMP + 1), S(sCT))
    g.i("s_lshl_b32", S(69), S(sTMP + 1), "10")
    g.i("s_lshl_b32", S(sTMP + 1), S(sTMP + 1), "11")
    g.i("s_add_u32", S(sTMP + 2), S(sTMP + 1), str(16 * 2048))
    g.i("v_mov_b32", V(vO3), "0x7f000000")
    g.i("v_cmp_eq_u32", "vcc", "3", V(vQ))
    g.i("v_cndmask_b32", V(vO2), V(vO1), V(vO3), "vcc")
    for rt in range(2):
        g.i("buffer_load_dwordx4", A(QF(rt, 0), 4), V(vO1), S(SRD_Q, 4), S(sTMP + 1 + rt), mod="offen", tag="oj")
        g.i("buffer_load_dwordx4", A(QF(rt, 1), 4), V(vO2), S(SRD_Q, 4), S(sTMP + 1 + rt), mod="offen offset:1024", tag="oj")
    gemm_main(g, True, name + "b")
    OA = 224
    for rt in range(2):
        for td in range(2):
            for p in range(2):
                d = V(OA + 8 * rt + 4 * td, 4)
                g.i(MFMA, d, A(KF(td, p), 4), A(QF(rt, p), 4), "0" if p == 0 else d)
    g.i("v_lshlrev_b32", V(vO1), "4", V(vLANE))
    for rt in range(2):
        b = OA + 8 * rt
        den = b + 7
        round_bf16(g, den)
        g.i("v_add_f32", V(den), f32(1e-6), V(den))
        round_bf16(g, den)
        g.i("v_rcp_f32", V(den), V(den))
        PKO = 240 + 4 * rt
        for j in range(4):
            g.i("v_cvt_pk_bf16_f32", V(PKO + j), V(b + 2 * j), V(b + 2 * j + 1))
        for j in range(4):
            g.i("v_lshlrev_b32", V(b + 2 * j), "16", V(PKO + j))
            if j < 3:
                g.i("v_and_b32", V(b + 2 * j + 1), "0xffff0000", V(PKO + j))
        for j in range(7):
            g.i("v_mul_f32", V(b + j), V(b + j), V(den))
        g.i("v_mov_b32", V(den), "0")
        for j in range(4):
            g.i("v_cvt_pk_bf16_f32", V(PKO + j), V(b + 2 * j), V(b + 2 * j + 1))
        g.i("buffer_store_dwordx4", V(PKO, 4), V(vO1), S(SRD_OO, 4), S(69), mod="offen")
        if rt == 0:
            g.i("s_add_u32", S(69), S(69), str(16 * 1024))
    ln_gelu_epilogue(g, SRD_O, 3584)
    stamp(g, 7); prof_store(g, 2, 8)
    g.label(END)
    g.raw("    s_endpgm")
```

```python
from common import *
import common
from k2 import lane_ids, tile_ids, unpack

GRID = 224
P8 = 1088
RING = 8
SLOT = 4 * P8
WREG = RING * SLOT
LDS = 4 * WREG
NV, ACCOFF = 512, 256
PD = 7
NU = 18

sWAVE, sRB, sCT, sT = 3, 6, 7, 62
sW4, sWO, sOB, sLB = 8, 9, 10, 11
SRD_H, SRD_W4, SRD_X, SRD_OUT, SRD_WO, SRD_OF, SRD_G = 44, 48, 52, 56, 88, 92, 84
vLANE, vM, vQ = 1, 3, 4
vBO, vDMA, vDMO, vTR, vXO, vL16, vGO = 10, 14, 15, 16, 17, 18, 19
BF = lambda slot, rt: (slot * 4 + rt) * 4
WFR = lambda buf, t: 32 + (buf * 4 + t) * 4
ACC = lambda st, rt, t: 64 + ((st * 4 + rt) * 4 + t) * 4
XR = 192
GR = 200

def unit_loads(g, u):
    slot = u % RING
    ops = []
    def dma(j):
        def f():
            if j == 0:
                g.i("s_add_u32", "m0", S(sLB), str(slot * SLOT))
            else:
                g.i("s_add_u32", "m0", "m0", str(P8))
            if u < 14:
                g.i("buffer_load_dwordx4", V(vDMA), S(SRD_W4, 4), S(sW4), mod="offen lds", tag=f"u{u}")
                g.i("s_add_u32", S(sW4), S(sW4), str(8 * 896))
            else:
                g.i("buffer_load_dwordx4", V(vDMO), S(SRD_WO, 4), S(sWO), mod="offen lds", tag=f"u{u}")
                g.i("s_add_u32", S(sWO), S(sWO), str(7 * 896))
        return f
    def bl(rt):
        def f():
            if u < 14:
                g.i("buffer_load_dwordx4", A(BF(slot, rt), 4), V(vBO + rt), S(SRD_H, 4), "0", mod=f"offen offset:{64 * u}", tag=f"u{u}")
            else:
                g.i("s_add_u32", S(sT), S(sOB), str(rt * 16384 + (u - 14) * 1024))
                g.i("buffer_load_dwordx4", A(BF(slot, rt), 4), V(vL16), S(SRD_OF, 4), S(sT), mod="offen", tag=f"u{u}")
        return f
    for j in range(4): ops.append(dma(j))
    for rt in range(4): ops.append(bl(rt))
    return ops

def w_reads(g, u):
    slot = u % RING
    for t in range(4):
        for hf in range(2):
            g.i("ds_read_b64_tr_b16", V(WFR(u & 1, t) + 2 * hf, 2), V(vTR), mod=f"offset:{slot * SLOT + 512 * hf + 64 * (t >> 1) + 8 * (t & 1)}")

def k4(g, name):
    kernel_begin(g, name)
    END = name + "_end"
    load_args(g)
    g.i("s_cmp_ge_u32", "s2", str(GRID))
    g.branch("s_cbranch_scc1", END)
    stamp(g, 0)
    lane_ids(g)
    tile_ids(g)
    g.waitcnt(lg=0)
    srd(g, SRD_H, P_WS, WS_H3, 2048 * 3584)
    srd(g, SRD_W4, P_W4, 0, 1792 * 896)
    srd(g, SRD_WO, P_WO, 0, 448 * 896)
    srd(g, SRD_X, P_WS, WS_X1, 2048 * 896)
    srd(g, SRD_OF, P_WS, WS_O, 2 << 20)
    srd(g, SRD_G, P_WS, WS_G, 8192)
    srd(g, SRD_OUT, P_OUT, 0, 2048 * 896)
    g.i("v_lshrrev_b32", V(5), "3", V(vLANE))
    g.i("v_and_b32", V(6), "7", V(vLANE))
    g.i("s_lshl_b32", S(sT + 1), S(sCT), "7")
    g.i("v_lshl_add_u32", V(6), V(6), "4", S(sT + 1))
    g.i("v_mul_u32_u24", V(7), "896", V(5))
    g.i("v_add_u32", V(vDMA), V(7), V(6))
    g.i("v_min_u32", V(5), "6", V(5))
    g.i("v_mul_u32_u24", V(7), "896", V(5))
    g.i("v_add_u32", V(vDMO), V(7), V(6))
    g.i("s_mul_i32", S(sW4), S(sWAVE), str(448 * 896))
    g.i("s_mul_i32", S(sWO), S(sWAVE), str(112 * 896))
    g.i("s_mul_i32", S(sLB), S(sWAVE), str(WREG))
    g.i("s_lshl_b32", S(sOB), S(sRB), "16")
    g.i("s_lshl_b32", S(sT), S(sWAVE), "12")
    g.i("s_add_u32", S(sOB), S(sOB), S(sT))
    g.i("v_lshlrev_b32", V(vL16), "4", V(vLANE))
    g.i("s_lshl_b32", S(sT + 4), S(sRB), "6")
    g.i("v_add_u32", V(5), S(sT + 4), V(vM))
    g.i("v_mul_u32_u24", V(5), "3584", V(5))
    g.i("s_mul_i32", S(sT + 3), S(sWAVE), "896")
    g.i("v_lshl_add_u32", V(5), V(vQ), "4", V(5))
    g.i("v_add_u32", V(vBO), S(sT + 3), V(5))
    for rt in range(1, 4):
        g.i("v_add_u32", V(vBO + rt), str(rt * 16 * 3584), V(vBO))
    g.i("v_bfe_u32", V(5), V(vLANE), "2", "2")
    g.i("v_and_b32", V(6), "3", V(vLANE))
    g.i("v_mul_u32_u24", V(7), str(P8), V(vQ))
    g.i("v_lshl_add_u32", V(7), V(5), "7", V(7))
    g.i("v_lshl_add_u32", V(7), V(6), "4", V(7))
    g.i("v_add_u32", V(vTR), S(sLB), V(7))
    for u in range(PD):
        for f in unit_loads(g, u): f()
    g.i("s_lshl_b32", S(sT + 3), S(sWAVE), "4")
    g.i("s_add_u32", S(sT + 3), S(sT + 3), S(sT + 4))
    g.i("v_add_u32", V(5), S(sT + 3), V(vM))
    g.i("v_lshlrev_b32", V(vGO), "2", V(5))
    g.i("v_mul_u32_u24", V(5), "896", V(5))
    g.i("v_lshl_add_u32", V(5), V(vQ), "4", V(5))
    g.i("v_add_u32", V(vXO), S(sT + 1), V(5))
    stamp(g, 2)
    g.wait_vm_tag("u0")
    w_reads(g, 0)
    for u in range(NU):
        st = 0 if u < 14 else 1
        slot = u % RING
        if u + 1 < NU:
            g.wait_vm_tag(f"u{u + 1}")
            w_reads(g, u + 1)
        lds = unit_loads(g, u + PD) if u + PD < NU else []
        if u == NU - PD:
            def xl():
                for p in range(2):
                    g.i("buffer_load_dwordx4", V(XR + 4 * p, 4), V(vXO), S(SRD_X, 4), "0", mod=f"offen offset:{64 * p}")
                g.i("buffer_load_dword", V(GR), V(vGO), S(SRD_G, 4), "0", mod="offen")
            lds = [xl]
        first = u in (0, 14)
        n = 0
        for t in range(4):
            for rt in range(4):
                g.i(MFMA, V(ACC(st, rt, t), 4), V(WFR(u & 1, t), 4), A(BF(slot, rt), 4), "0" if first else V(ACC(st, rt, t), 4))
                n += 1
                if lds and n >= 4 and n % 1 == 0:
                    lds.pop(0)()
        assert not lds
    stamp(g, 3)
    g.barrier()
    g.i("s_lshl_b32", S(sT + 3), S(sWAVE), "13")
    g.i("v_add_u32", V(6), S(sT + 3), V(vL16))
    g.i("v_add_u32", V(8), "65536", V(6))
    for rt in range(4):
        for st in range(2):
            for t in range(4):
                g.i("ds_write_b128", V(6 if rt < 2 else 8), V(ACC(st, rt, t), 4), mod=f"offset:{(rt & 1) * 32768 + st * 4096 + t * 1024}")
    g.i("s_lshl_b32", S(sT + 3), S(sWAVE), "15")
    g.i("v_add_u32", V(7), S(sT + 3), V(vL16))
    g.waitcnt(lg=0)
    g.barrier()
    RD = 64
    for s in range(4):
        for q in range(8):
            g.i("ds_read_b128", V(RD + (s * 8 + q) * 4, 4), V(7), mod=f"offset:{s * 8192 + q * 1024}")
    XU = 32
    for j in range(8):
        unpack(g, XU + 2 * j, XR + j)
    G2, OM = 202, 204
    g.i("v_sub_f32", V(OM), "1.0", V(GR))
    round_bf16(g, OM)
    g.i("v_mov_b32", V(OM + 1), V(OM))
    g.i("v_mov_b32", V(G2), V(GR))
    g.i("v_mov_b32", V(G2 + 1), V(GR))
    for j in range(16):
        g.i("v_pk_add_f32", V(RD + 2 * j, 2), V(RD + 2 * j, 2), V(RD + 32 + 2 * j, 2))
        g.i("v_pk_add_f32", V(RD + 64 + 2 * j, 2), V(RD + 64 + 2 * j, 2), V(RD + 96 + 2 * j, 2))
    for j in range(16):
        g.i("v_pk_add_f32", V(RD + 2 * j, 2), V(RD + 2 * j, 2), V(RD + 64 + 2 * j, 2))
    PKR = 112
    def rnd(base, n):
        for j in range(n):
            g.i("v_cvt_pk_bf16_f32", V(PKR + j), V(base + 2 * j), V(base + 2 * j + 1))
        for j in range(n):
            unpack(g, base + 2 * j, PKR + j)
    rnd(RD, 16)
    for j in range(8):
        g.i("v_pk_add_f32", V(RD + 2 * j, 2), V(RD + 2 * j, 2), V(XU + 2 * j, 2))
        g.i("v_pk_mul_f32", V(RD + 16 + 2 * j, 2), V(RD + 16 + 2 * j, 2), V(G2, 2))
    rnd(RD, 16)
    for j in range(8):
        g.i("v_pk_mul_f32", V(RD + 2 * j, 2), V(RD + 2 * j, 2), V(OM, 2))
    rnd(RD, 8)
    for j in range(8):
        g.i("v_pk_add_f32", V(RD + 2 * j, 2), V(RD + 2 * j, 2), V(RD + 16 + 2 * j, 2))
    for j in range(8):
        g.i("v_cvt_pk_bf16_f32", V(PKR + j), V(RD + 2 * j), V(RD + 2 * j + 1))
    for p in range(2):
        g.i("buffer_store_dwordx4", V(PKR + 4 * p, 4), V(vXO), S(SRD_OUT, 4), "0", mod=f"offen offset:{64 * p}")
    stamp(g, 4); prof_store(g, 3, 5)
    g.label(END)
    g.raw("    s_endpgm")
```

```python
import sys, importlib
sys.path.insert(0, "gen")
from common import *
import k1
HDR = open("gated_mix__linear_kernel_hedgehog__mixer_s_mlp__prompt.s.ref").read().split("; Override launch")[0]

def build(path, nk=4):
    g = Gen()
    kernels = []
    k1.k1(g, "k1_kernel"); kernels.append(("k1_kernel", 256, k1.K1_LDS, 512, 256))
    if nk >= 2:
        import k2
        k2.k2(g, "k2_kernel"); kernels.append(("k2_kernel", k2.GRID, k2.LDS, k2.NV, k2.ACCOFF))
    if nk >= 3:
        import k3
        k3.k3(g, "k3_kernel"); kernels.append(("k3_kernel", 256, k3.LDS, 512, 256))
    if nk >= 4:
        import k4
        k4.k4(g, "k4_kernel"); kernels.append(("k4_kernel", k4.GRID, k4.LDS, k4.NV, k4.ACCOFF))
    s = HDR
    for n, grid, lds, nv, acc in kernels:
        s += f"; @launch kernel={n} grid=({grid},1,1) block=(256,1,1) lds={lds}\n"
    s += '.amdgcn_target "amdgcn-amd-amdhsa--gfx950"\n.text\n'
    s += g.text()
    s += '.section .rodata,"a"\n'
    for n, grid, lds, nv, acc in kernels:
        s += ".p2align 6\n" + kernel_desc(n, nv, acc)
    open(path, "w").write(s)

if __name__ == "__main__":
    nk = int(sys.argv[1]) if len(sys.argv) > 1 else 4
    path = sys.argv[2] if len(sys.argv) > 2 else "gated_mix__linear_kernel_hedgehog__mixer_s_mlp__prompt.s"
    if len(sys.argv) > 3:
        import common
        common.PROF = True
    build(path, nk)
```

```python
from common import *
import common

GP = 1088
L_PHI = 112 * GP
L_ZERO = L_PHI + 7168
L_END = L_ZERO + 2048
K1_LDS = L_END

sWAVE, sRB, sCT = 3, 6, 7
sPITCH, sCOLB, sDELTA, sHEAD0, sSLOTM = 8, 9, 10, 11, 12
sSOFF, sSTEP = 13, 14
SRD_X, SRD_W, SRD_P, SRD_O = 44, 48, 52, 56
sONES = 60
sTMP = 62
vLANE, vM, vQ = 1, 3, 4
vXO = 10
vDMA, vTR0, vTR1, vPHI = 12, 13, 14, 15
XF = lambda rt, ks: 16 + (rt * 14 + ks) * 4
ACC = lambda rt, t: 128 + (rt * 7 + t) * 4
vST = 184
vONES = 188
WF = lambda buf, t: (buf * 7 + t) * 4
CS = lambda t: 56 + 4 * t
PF = lambda t, s: 84 + (t * 4 + s) * 4

def ids(g, nwg, endlabel):
    load_args(g)
    g.i("s_cmp_ge_u32", "s2", str(nwg))
    g.branch("s_cbranch_scc1", endlabel)
    stamp(g, 0)
    g.i("v_and_b32", V(vLANE), "63", "v0")
    g.i("v_lshrrev_b32", V(2), "6", "v0")
    g.i("v_readfirstlane_b32", S(sWAVE), V(2))
    g.i("s_and_b32", "s4", "s2", "7")
    g.i("s_lshr_b32", "s5", "s2", "3")
    g.i("s_lshr_b32", S(sRB), "s4", "1")
    g.i("s_lshl_b32", S(sRB), S(sRB), "2")
    g.i("s_lshr_b32", S(sTMP), "s5", "3")
    g.i("s_add_u32", S(sRB), S(sRB), S(sTMP))
    g.i("s_and_b32", S(sCT), "s4", "1")
    g.i("s_lshl_b32", S(sCT), S(sCT), "3")
    g.i("s_and_b32", S(sTMP), "s5", "7")
    g.i("s_add_u32", S(sCT), S(sCT), S(sTMP))
    g.i("v_and_b32", V(vM), "15", V(vLANE))
    g.i("v_lshrrev_b32", V(vQ), "4", V(vLANE))

def gemm_addr(g):
    g.i("s_lshl_b32", S(sTMP), S(sRB), "7")
    g.i("s_lshl_b32", S(sTMP + 1), S(sWAVE), "5")
    g.i("s_add_u32", S(sTMP), S(sTMP), S(sTMP + 1))
    g.i("v_add_u32", V(5), S(sTMP), V(vM))
    g.i("v_mul_u32_u24", V(5), "896", V(5))
    g.i("v_lshl_add_u32", V(vXO), V(vQ), "4", V(5))
    g.i("v_add_u32", V(vXO + 1), str(16 * 896), V(vXO))
    g.i("v_mul_u32_u24", V(5), "37", V(vLANE))
    g.i("v_lshrrev_b32", V(5), "9", V(5))
    g.i("v_mul_u32_u24", V(6), "14", V(5))
    g.i("v_sub_u32", V(6), V(vLANE), V(6))
    g.i("v_mul_lo_u32", V(7), V(5), S(sPITCH))
    g.i("v_lshl_add_u32", V(7), V(6), "4", V(7))
    g.i("v_add_u32", V(7), S(sCOLB), V(7))
    g.i("v_add_u32", V(8), S(sDELTA), V(7))
    g.i("v_cmp_lt_u32", "vcc", "6", V(6))
    g.i("v_cndmask_b32", V(7), V(7), V(8), "vcc")
    g.i("v_mov_b32", V(8), "0x80000000")
    g.i("v_cmp_lt_u32", "vcc", "55", V(vLANE))
    g.i("v_cndmask_b32", V(vDMA), V(7), V(8), "vcc")
    g.i("v_bfe_u32", V(5), V(vLANE), "2", "2")
    g.i("v_and_b32", V(6), "3", V(vLANE))
    g.i("v_mul_u32_u24", V(7), str(2 * GP), V(vQ))
    g.i("v_mad_u32_u24", V(7), V(5), V(9), V(7)) if False else None
    g.i("v_mul_u32_u24", V(8), "224", V(5))
    g.i("v_add_u32", V(7), V(7), V(8))
    g.i("v_mul_u32_u24", V(8), "56", V(6))
    g.i("v_add_u32", V(vTR0), V(7), V(8))
    g.i("v_add_u32", V(vTR1), str(56 * GP), V(vTR0))
    g.i("s_lshl_b32", S(sSTEP), S(sPITCH), "2")
    g.i("s_mul_i32", S(sSOFF), S(sSTEP), S(sWAVE))
    g.i("s_lshl_b32", S(sSTEP), S(sSTEP), "2")
    g.i("s_mul_i32", S(sTMP), S(sWAVE), str(GP))
    g.i("v_mov_b32", V(8), "0")
    g.i("v_mov_b32", V(9), "0")
    g.i("v_lshlrev_b32", V(7), "3", "v0")
    g.i("ds_write_b64", V(7), V(8, 2), mod=f"offset:{L_ZERO - 65536}") if False else None
    g.i("v_add_u32", V(7), str(L_ZERO), V(7))
    g.i("ds_write_b64", V(7), V(8, 2))

sSK, sKX, sWB = 15, 67, 68
PD = 3

def gemm_loads_init(g):
    g.i("s_mov_b32", "m0", S(sTMP))
    g.i("s_and_b32", S(sSK), "s5", "7")
    g.i("s_lshr_b32", S(sKX), "s5", "3")
    g.i("s_lshl_b32", S(sKX), S(sKX), "1")
    g.i("s_add_u32", S(sSK), S(sSK), S(sKX))
    g.i("s_sub_u32", S(sKX), S(sSK), "7")
    g.i("s_cmp_ge_u32", S(sSK), "7")
    g.i("s_cselect_b32", S(sSK), S(sKX), S(sSK))
    g.i("s_mov_b32", S(sWB), S(sSOFF))

def stage_loads(g, st):
    ops = []
    def head():
        g.i("s_lshl_b32", S(sKX), S(sSK), "7")
        g.i("s_lshl_b32", S(sSOFF), S(sSTEP), "2")
        g.i("s_mul_i32", S(sSOFF), S(sSOFF), S(sSK))
        g.i("s_add_u32", S(sSOFF), S(sSOFF), S(sWB))
        g.i("s_add_u32", S(sSK), S(sSK), "1")
        g.i("s_cmp_eq_u32", S(sSK), "7")
        g.i("s_cselect_b32", S(sSK), "0", S(sSK))
    def dma(j):
        def f():
            if j == 0: head()
            g.i("buffer_load_dwordx4", V(vDMA), S(SRD_W, 4), S(sSOFF), mod="offen lds", tag=f"st{st}")
            g.i("s_add_u32", "m0", "m0", str(4 * GP))
            if j < 3:
                g.i("s_add_u32", S(sSOFF), S(sSOFF), S(sSTEP))
        return f
    def xl(ks, rt):
        def f():
            g.i("buffer_load_dwordx4", V(XF(rt, ks), 4), V(vXO + rt), S(SRD_X, 4), S(sKX),
                mod=f"offen offset:{64 * (ks & 1)}", tag=f"st{st}")
        return f
    for j in range(4):
        ops.append(dma(j))
    for rt in range(2):
        for ks in (2 * st, 2 * st + 1):
            ops.append(xl(ks, rt))
    return ops

def gemm_loads(g):
    gemm_loads_init(g)
    for st in range(PD):
        for f in stage_loads(g, st):
            f()

def w_reads(ks):
    buf = ks & 1
    base = vTR0 if ks < 7 else vTR1
    k0 = ks if ks < 7 else ks - 7
    return [("ds_read_b64_tr_b16", A(WF(buf, t) + 2 * hf, 2), V(base), f"offset:{(8 * k0 + hf) * GP + 8 * t}")
            for t in range(7) for hf in range(2)]

SA = lambda rt: 196 + 8 * rt

def gemm_main(g, ln, pfx, after_first_barrier=None):
    stamp(g, 2)
    g.wait_vm_tag("st0")
    g.waitcnt(lg=0)
    g.barrier()
    stamp(g, 3)
    for r in w_reads(0):
        g.i(r[0], r[1], r[2], mod=r[3])
    if after_first_barrier:
        after_first_barrier()
    for ks in range(14):
        buf = ks & 1
        mf = [(t, rt) for t in range(7) for rt in range(2)]
        rd = w_reads(ks + 1) if ks < 13 else []
        lds = []
        if (ks & 1) == 0 and ks // 2 + PD < 7:
            lds = stage_loads(g, ks // 2 + PD)
        newstage = ks < 13 and (ks & 1) == 1
        nfirst = 6 if newstage else 0
        for n, (t, rt) in enumerate(mf):
            if newstage and n == nfirst:
                g.wait_vm_tag(f"st{(ks + 1) // 2}")
                g.barrier()
                if ks in (5, 11): stamp(g, 4 if ks == 5 else 5)
            g.i(MFMA, V(ACC(rt, t), 4), A(WF(buf, t), 4), V(XF(rt, ks), 4), "0" if ks == 0 else V(ACC(rt, t), 4))
            if n >= nfirst:
                left = len(mf) - n
                k = -(-len(rd) // left)
                for r in rd[:k]:
                    g.i(r[0], r[1], r[2], mod=r[3])
                rd = rd[k:]
            if lds and n >= 2:
                lds.pop(0)()
        assert not lds
        if ln:
            for rt in range(2):
                g.i(MFMA, A(SA(rt), 4), V(vONES, 4), V(XF(rt, ks), 4), "0" if ks == 0 else A(SA(rt), 4))
                g.i(MFMA, A(SA(rt) + 4, 4), V(XF(rt, ks), 4), V(XF(rt, ks), 4), "0" if ks == 0 else A(SA(rt) + 4, 4))
            g.i("s_cmp_eq_u32", S(sWAVE), str(ks & 3))
            g.cond_begin("s_cbranch_scc0", f"{pfx}_cs{ks}")
            for t in range(7):
                g.i(MFMA, A(CS(t), 4), A(WF(buf, t), 4), V(vONES, 4), "0" if ks < 4 else A(CS(t), 4))
            g.cond_end()
    stamp(g, 6)

def ln_setup(g):
    g.i("s_mov_b32", S(sONES), "0x3f803f80")
    for j in range(4):
        g.i("v_mov_b32", V(vONES + j), "0x3f803f80")

def ln_gelu_epilogue(g, srd_out, out_pitch):
    T = 16
    g.i("v_mul_u32_u24", V(T), "112", V(vQ))
    g.i("v_add_u32", V(T), str(L_ZERO), V(T))
    g.i("s_mov_b32", S(sTMP), "0x00010001")
    g.i("s_mov_b32", S(sTMP + 1), "0x00010001")
    g.i("s_mov_b64", "exec", S(sTMP, 2))
    for t in range(7):
        for r in range(4):
            g.i("ds_add_f32", V(T), A(CS(t) + r), mod=f"offset:{16 * t + 4 * r}")
    g.i("s_mov_b64", "exec", "-1")
    g.i("v_lshrrev_b32", V(T + 2), "2", V(vM))
    g.i("v_and_b32", V(T + 3), "3", V(vM))
    for rt in range(2):
        g.i("v_accvgpr_read_b32", V(vST + 2 * rt), A(SA(rt)))
        q2 = vST + 2 * rt + 1
        g.i("v_accvgpr_read_b32", V(q2), A(SA(rt) + 4))
        for r in range(1, 4):
            g.i("v_accvgpr_read_b32", V(T + 1), A(SA(rt) + 4 + r))
            g.i("v_cmp_eq_u32", "vcc", str(r), V(T + 3))
            g.i("v_cndmask_b32", V(q2), V(q2), V(T + 1), "vcc")
        g.i("v_cmp_eq_u32", "vcc", V(T + 2), V(vQ))
        g.i("v_cndmask_b32", V(q2), "0", V(q2), "vcc")
        allreduce4(g, q2, T + 1)
    MEAN, RS = 20, 24
    for rt in range(2):
        s, q2 = vST + 2 * rt, vST + 2 * rt + 1
        g.i("v_mul_f32", V(s), f32(1.0 / 448), V(s))
        g.i("v_mul_f32", V(q2), f32(1.0 / 448), V(q2))
        g.i("v_fma_f32", V(q2), "-" + V(s), V(s), V(q2))
        g.i("v_max_f32", V(q2), "0", V(q2))
        round_bf16(g, s)
        round_bf16(g, q2)
        g.i("v_add_f32", V(q2), f32(1e-5), V(q2))
        round_bf16(g, q2)
        g.i("v_sqrt_f32", V(q2), V(q2))
        round_bf16(g, q2)
        g.i("v_rcp_f32", V(RS + 2 * rt), V(q2))
        g.i("v_mul_f32", V(MEAN + 2 * rt), "-1.0", V(s))
        g.i("v_mov_b32", V(MEAN + 2 * rt + 1), V(MEAN + 2 * rt))
        g.i("v_mov_b32", V(RS + 2 * rt + 1), V(RS + 2 * rt))
    C0, C1, ONE = 28, 30, 32
    for r, c in ((C0, GC0), (C1, GC1), (ONE, 1.0)):
        g.i("v_mov_b32", V(r), f32(c))
        g.i("v_mov_b32", V(r + 1), f32(c))
    OO = 34
    g.i("s_lshl_b32", S(sTMP), S(sRB), "3")
    g.i("s_lshl_b32", S(sTMP + 1), S(sWAVE), "1")
    g.i("s_add_u32", S(sTMP), S(sTMP), S(sTMP + 1))
    g.i("s_lshl_b32", S(sTMP), S(sTMP), "2")
    g.i("s_add_u32", S(sTMP), S(sTMP), S(sCT))
    g.i("s_sub_u32", S(sTMP), S(sTMP), "12")
    g.i("s_lshl_b32", S(sTMP), S(sTMP), "12")
    g.i("s_add_u32", S(sTMP + 1), S(sTMP), "16384")
    g.i("v_lshlrev_b32", V(OO), "4", V(vLANE))
    g.waitcnt(lg=0)
    g.barrier()
    CSV = 36
    for t in range(7):
        g.i("ds_read_b128", V(CSV + 4 * t, 4), V(T), mod=f"offset:{16 * t}")
    W0 = 64
    for rt in range(2):
        U, Z, PK = 64, 92, 192 + 16 * rt
        for p in range(14):
            a = V(ACC(rt, 0) + 2 * p, 2)
            g.i("v_pk_fma_f32", V(U + 2 * p, 2), V(CSV + 2 * p, 2), V(MEAN + 2 * rt, 2), a)
        for p in range(14):
            g.i("v_pk_mul_f32", V(U + 2 * p, 2), V(U + 2 * p, 2), V(RS + 2 * rt, 2))
        for p in range(14):
            g.i("v_pk_mul_f32", V(Z + 2 * p, 2), V(U + 2 * p, 2), V(U + 2 * p, 2))
        for p in range(14):
            g.i("v_pk_fma_f32", V(Z + 2 * p, 2), V(Z + 2 * p, 2), V(C1, 2), V(C0, 2))
        for p in range(14):
            g.i("v_pk_mul_f32", V(Z + 2 * p, 2), V(Z + 2 * p, 2), V(U + 2 * p, 2))
        for e in range(28):
            g.i("v_exp_f32", V(Z + e), V(Z + e))
        for p in range(14):
            g.i("v_pk_add_f32", V(Z + 2 * p, 2), V(Z + 2 * p, 2), V(ONE, 2))
        for e in range(28):
            g.i("v_rcp_f32", V(Z + e), V(Z + e))
        for p in range(14):
            g.i("v_pk_mul_f32", V(U + 2 * p, 2), V(U + 2 * p, 2), V(Z + 2 * p, 2))
        for p in range(14):
            g.i("v_cvt_pk_bf16_f32", V(PK + p), V(U + 2 * p), V(U + 2 * p + 1))
        for c in range(3):
            g.i("buffer_store_dwordx4", V(PK + 4 * c, 4), V(OO), S(srd_out, 4), S(sTMP + rt), mod=f"offen offset:{1024 * c}")
        g.i("buffer_store_dwordx2", V(PK + 12, 2), V(OO), S(srd_out, 4), S(sTMP + rt), mod="offen offset:3072")

def feature_map(g, B, P, PKD, W):
    for s in range(4):
        for t in range(7):
            g.i(MFMA, V(P + 4 * t, 4), A(PF(t, s), 4), V(B + 4 * s, 4), "0" if s == 0 else V(P + 4 * t, 4))
    EP, EM = W, W + 28
    MX, MN, LP, LM, SP, SM = W + 56, W + 58, W + 60, W + 62, W + 64, W + 66
    for p in range(14):
        g.i("v_cvt_pk_bf16_f32", V(EP + p), V(P + 2 * p), V(P + 2 * p + 1))
    for p in range(14):
        g.i("v_lshlrev_b32", V(P + 2 * p), "16", V(EP + p))
        g.i("v_and_b32", V(P + 2 * p + 1), "0xffff0000", V(EP + p))
    g.i("v_max3_f32", V(MX), V(P), V(P + 1), V(P + 2))
    g.i("v_min3_f32", V(MN), V(P), V(P + 1), V(P + 2))
    for e in range(3, 27, 2):
        g.i("v_max3_f32", V(MX), V(MX), V(P + e), V(P + e + 1))
        g.i("v_min3_f32", V(MN), V(MN), V(P + e), V(P + e + 1))
    g.i("v_max_f32", V(MX), V(MX), V(P + 27))
    g.i("v_min_f32", V(MN), V(MN), V(P + 27))
    g.i("v_mul_f32", V(MX), f32(-LOG2E), V(MX))
    g.i("v_mul_f32", V(MN), f32(LOG2E), V(MN))
    g.i("v_mov_b32", V(MX + 1), V(MX))
    g.i("v_mov_b32", V(MN + 1), V(MN))
    g.i("v_mov_b32", V(LP), f32(LOG2E)); g.i("v_mov_b32", V(LP + 1), f32(LOG2E))
    g.i("v_mov_b32", V(LM), f32(-LOG2E)); g.i("v_mov_b32", V(LM + 1), f32(-LOG2E))
    for p in range(14):
        g.i("v_pk_fma_f32", V(EP + 2 * p, 2), V(P + 2 * p, 2), V(LP, 2), V(MX, 2))
        g.i("v_pk_fma_f32", V(EM + 2 * p, 2), V(P + 2 * p, 2), V(LM, 2), V(MN, 2))
    for e in range(56):
        g.i("v_exp_f32", V(EP + e), V(EP + e))
    g.i("v_pk_add_f32", V(SP, 2), V(EP, 2), V(EP + 2, 2))
    g.i("v_pk_add_f32", V(SM, 2), V(EM, 2), V(EM + 2, 2))
    for p in range(2, 14):
        g.i("v_pk_add_f32", V(SP, 2), V(SP, 2), V(EP + 2 * p, 2))
        g.i("v_pk_add_f32", V(SM, 2), V(SM, 2), V(EM + 2 * p, 2))
    g.i("v_add_f32", V(SP), V(SP), V(SP + 1))
    g.i("v_add_f32", V(SM), V(SM), V(SM + 1))
    g.i("v_rcp_f32", V(SP), V(SP))
    g.i("v_rcp_f32", V(SM), V(SM))
    g.i("v_mov_b32", V(SP + 1), V(SP))
    g.i("v_mov_b32", V(SM + 1), V(SM))
    for p in range(14):
        g.i("v_pk_mul_f32", V(EP + 2 * p, 2), V(EP + 2 * p, 2), V(SP, 2))
        g.i("v_pk_mul_f32", V(EM + 2 * p, 2), V(EM + 2 * p, 2), V(SM, 2))
    for p in range(28):
        g.i("v_cvt_pk_bf16_f32", V(PKD + p), V(EP + 2 * p), V(EP + 2 * p + 1))

L_PK = 0
L_VX = 36864

def k1(g, name):
    kernel_begin(g, name)
    END = name + "_end"
    ids(g, 256, END)
    g.i("s_mov_b32", S(sPITCH), "2688")
    g.i("s_mov_b32", S(sDELTA), "0")
    g.i("s_mul_i32", S(sCOLB), S(sCT), "224")
    g.i("s_lshl_b32", S(sHEAD0), S(sCT), "2")
    g.i("s_mov_b32", S(sSLOTM), "3")
    g.waitcnt(lg=0)
    srd(g, SRD_X, P_X, 0, 2048 * 896)
    srd(g, SRD_W, P_WQKV, 0, 448 * 2688)
    srd(g, SRD_P, P_PHI, 0, 16 * 1568)
    g.i("s_cmp_ge_u32", S(sCT), "12")
    g.branch("s_cbranch_scc1", name + "_w1")
    snap_w1 = g.snapshot()
    g.i("s_cmp_lt_u32", S(sCT), "4")
    g.branch("s_cbranch_scc1", name + "_qk")
    g.i("s_sub_u32", S(sTMP), S(sCT), "4")
    g.i("s_mul_i32", S(sCOLB), S(sTMP), "112")
    g.i("s_add_u32", S(sCOLB), S(sCOLB), "896")
    g.i("s_mov_b32", S(sDELTA), "784")
    g.i("s_lshl_b32", S(sHEAD0), S(sTMP), "1")
    g.i("s_mov_b32", S(sSLOTM), "1")
    g.label(name + "_qk")
    gemm_addr(g)
    g.i("s_mul_i32", S(sTMP + 1), S(sHEAD0), "1568")
    g.i("v_lshlrev_b32", V(5), "4", "v0")
    g.i("v_add_u32", V(5), S(sTMP + 1), V(5))
    g.i("s_lshl_b32", S(sTMP + 1), S(sWAVE), "10")
    g.i("s_add_u32", "m0", S(sTMP + 1), str(L_PHI))
    g.i("buffer_load_dwordx4", V(5), S(SRD_P, 4), "0", mod="offen lds", tag="st0")
    g.i("v_add_u32", V(5), "4096", V(5))
    g.i("s_add_u32", "m0", S(sTMP + 1), str(L_PHI + 4096))
    g.i("s_cmp_eq_u32", S(sWAVE), "3")
    g.branch("s_cbranch_scc1", name + "_nophi2")
    g.i("buffer_load_dwordx4", V(5), S(SRD_P, 4), "0", mod="offen lds", tag="st0")
    g.label(name + "_nophi2")
    g.i("v_and_b32", V(5), S(sSLOTM), V(vQ))
    g.i("v_mul_u32_u24", V(5), "1568", V(5))
    g.i("v_bfe_u32", V(6), V(vLANE), "2", "2")
    g.i("v_mul_u32_u24", V(6), "56", V(6))
    g.i("v_add3_u32", V(5), V(5), V(6), str(L_PHI)) if False else None
    g.i("v_add_u32", V(5), V(5), V(6))
    g.i("v_add_u32", V(5), str(L_PHI), V(5))
    g.i("v_mov_b32", V(6), str(L_ZERO))
    g.i("v_and_b32", V(7), "3", V(vLANE))
    g.i("v_cmp_eq_u32", "vcc", V(7), V(vQ))
    g.i("v_cndmask_b32", V(vPHI), V(6), V(5), "vcc")
    gemm_loads(g)
    g.i("v_mov_b32", V(5), "0")
    for t in range(7):
        g.i("v_accvgpr_write_b32", A(PF(t, 3) + 2), V(5))
        g.i("v_accvgpr_write_b32", A(PF(t, 3) + 3), V(5))
    def phi_reads():
        for t in range(7):
            for s in range(4):
                for hf in range(2):
                    if s == 3 and hf == 1: continue
                    g.i("ds_read_b64_tr_b16", A(PF(t, s) + 2 * hf, 2), V(vPHI), mod=f"offset:{(8 * s + 4 * hf) * 56 + 8 * t}")
    gemm_main(g, False, name + "a", phi_reads)
    g.i("s_cmp_lt_u32", S(sCT), "4")
    g.branch("s_cbranch_scc0", name + "_kv")
    snap_kv = g.snapshot()
    srd(g, SRD_O, P_WS, WS_PHIQ, 4 << 20)
    B, P, PKD, W = 16, 32, 192, 60
    OO = 8
    g.i("s_lshl_b32", S(sTMP), S(sRB), "3")
    g.i("s_lshl_b32", S(sTMP + 1), S(sWAVE), "1")
    g.i("s_add_u32", S(sTMP), S(sTMP), S(sTMP + 1))
    g.i("s_lshl_b32", S(sTMP), S(sTMP), "4")
    g.i("s_add_u32", S(sTMP), S(sTMP), S(sHEAD0))
    g.i("v_add_u32", V(OO), S(sTMP), V(vQ))
    g.i("v_lshlrev_b32", V(OO), "11", V(OO))
    g.i("v_lshl_add_u32", V(OO), V(vM), "4", V(OO))
    g.i("v_add_u32", V(OO + 1), str(16 * 2048), V(OO))
    g.i("v_mov_b32", V(B + 14), "0")
    g.i("v_mov_b32", V(B + 15), "0")
    for rt in range(2):
        for p in range(14):
            g.i("v_cvt_pk_bf16_f32", V(B + p), V(ACC(rt, 0) + 2 * p), V(ACC(rt, 0) + 2 * p + 1))
        feature_map(g, B, P, PKD + 28 * rt, W)
        for ci in range(7):
            g.i("buffer_store_dwordx4", V(PKD + 28 * rt + 4 * ci, 4), V(OO + rt), S(SRD_O, 4), "0", mod=f"offen offset:{256 * ci}")
    stamp(g, 7); prof_store(g, 0, 8)
    g.raw("    s_endpgm")
    g.restore(snap_kv)
    g.label(name + "_kv")
    srd(g, SRD_O, P_WS, WS_KVP, 2 << 20)
    B, P, PKD, W = 16, 32, 192, 60
    B2 = 224
    PV = 224
    for p in range(14):
        g.i("v_cvt_pk_bf16_f32", V(B + p), V(ACC(0, 0) + 2 * p), V(ACC(0, 0) + 2 * p + 1))
        g.i("v_cvt_pk_bf16_f32", V(B2 + p), V(ACC(1, 0) + 2 * p), V(ACC(1, 0) + 2 * p + 1))
    g.i("v_mov_b32", V(B + 14), "0")
    g.i("v_mov_b32", V(B + 15), "0")
    for p in range(14):
        g.i("v_permlane32_swap_b32", V(B + p), V(B2 + p))
    g.barrier()
    VO = 8
    g.i("s_lshl_b32", S(sTMP), S(sWAVE), "5")
    g.i("v_add_u32", V(VO), S(sTMP), V(vM))
    g.i("v_mul_u32_u24", V(VO), "80", V(VO))
    g.i("v_and_b32", V(VO + 1), "1", V(vQ))
    g.i("v_mul_u32_u24", V(VO + 1), "10240", V(VO + 1))
    g.i("v_add_u32", V(VO), V(VO), V(VO + 1))
    g.i("v_mov_b32", V(9), "1.0")
    for rt in range(2):
        PVr = PV + 16 * rt
        for c in range(4):
            vals = [V(ACC(rt, 0) + 7 * c + j) for j in range(7)] + [V(9)]
            for j in range(4):
                g.i("v_cvt_pk_bf16_f32", V(PVr + 4 * c + j), vals[2 * j], vals[2 * j + 1])
    g.i("s_mov_b32", S(sTMP), "0")
    g.i("s_mov_b32", S(sTMP + 1), "-1")
    g.i("s_mov_b64", "exec", S(sTMP, 2))
    for rt in range(2):
        for c in range(4):
            g.i("ds_write_b128", V(VO), V(PV + 16 * rt + 4 * c, 4), mod=f"offset:{L_VX + rt * 16 * 80 + 16 * c}")
    g.i("s_mov_b64", "exec", "-1")
    feature_map(g, B, P, PKD, W)
    KO = 8
    g.i("s_lshl_b32", S(sTMP), S(sWAVE), "5")
    g.i("v_lshrrev_b32", V(KO), "1", V(vQ))
    g.i("v_lshlrev_b32", V(KO), "4", V(KO))
    g.i("v_add3_u32", V(KO), V(KO), V(vM), S(sTMP))
    g.i("v_and_b32", V(KO + 1), "1", V(vQ))
    g.i("v_lshl_add_u32", V(KO), V(KO + 1), "7", V(KO))
    g.i("v_mul_u32_u24", V(KO), "144", V(KO))
    for ci in range(7):
        g.i("ds_write_b128", V(KO), V(PKD + 4 * ci, 4), mod=f"offset:{L_PK + 16 * ci}")
    RA, RB_ = 8, 9
    g.i("v_bfe_u32", V(5), V(vLANE), "2", "2")
    g.i("v_lshl_add_u32", V(5), V(vQ), "3", V(5))
    g.i("v_and_b32", V(6), "3", V(vLANE))
    g.i("s_lshr_b32", S(sTMP), S(sWAVE), "1")
    g.i("s_and_b32", S(sTMP + 1), S(sWAVE), "1")
    g.i("s_mul_i32", S(sTMP + 2), S(sTMP), str(128 * 144))
    g.i("s_mul_i32", S(sTMP + 3), S(sTMP), str(128 * 80))
    g.i("s_lshl_b32", S(sTMP + 4), S(sTMP + 1), "3")
    g.i("s_add_u32", S(sTMP + 3), S(sTMP + 3), S(sTMP + 4))
    g.i("v_mul_u32_u24", V(7), "144", V(5))
    g.i("v_lshl_add_u32", V(7), V(6), "4", V(7))
    g.i("v_add_u32", V(RA), S(sTMP + 2), V(7))
    g.i("v_mul_u32_u24", V(7), "80", V(5))
    g.i("v_lshl_add_u32", V(7), V(6), "4", V(7))
    g.i("v_add_u32", V(RB_), S(sTMP + 3), V(7))
    g.i("s_lshl_b32", S(sTMP + 2), S(sRB), "4")
    g.i("s_add_u32", S(sTMP + 2), S(sTMP + 2), S(sHEAD0))
    g.i("s_add_u32", S(sTMP + 2), S(sTMP + 2), S(sTMP))
    g.i("s_lshl_b32", S(sTMP + 2), S(sTMP + 2), "1")
    g.i("s_add_u32", S(sTMP + 2), S(sTMP + 2), S(sTMP + 1))
    g.i("s_lshl_b32", S(sTMP + 2), S(sTMP + 2), "12")
    g.i("v_lshlrev_b32", V(7), "5", V(vLANE))
    g.waitcnt(lg=0)
    g.barrier()
    VB, PA, KV = 16, 32, 96
    for ks in range(4):
        for hf in range(2):
            g.i("ds_read_b64_tr_b16", V(VB + 4 * ks + 2 * hf, 2), V(RB_), mod=f"offset:{L_VX + (32 * ks + 4 * hf) * 80}")
        for tf in range(4):
            for hf in range(2):
                g.i("ds_read_b64_tr_b16", V(PA + 16 * ks + 4 * tf + 2 * hf, 2), V(RA),
                    mod=f"offset:{L_PK + (32 * ks + 4 * hf) * 144 + 64 * (tf >> 1) + 8 * (tf & 1)}")
    for ks in range(4):
        for tf in range(4):
            g.i(MFMA, V(KV + 4 * tf, 4), V(PA + 16 * ks + 4 * tf, 4), V(VB + 4 * ks, 4), "0" if ks == 0 else V(KV + 4 * tf, 4))
    for tf in range(4):
        g.i("buffer_store_dwordx4", V(KV + 4 * tf, 4), V(7), S(SRD_O, 4), S(sTMP + 2), mod=f"offen offset:{2048 * (tf >> 1) + 16 * (tf & 1)}")
    stamp(g, 7); prof_store(g, 0, 8)
    g.raw("    s_endpgm")
    g.restore(snap_w1)
    g.label(name + "_w1")
    g.i("s_mov_b32", S(sPITCH), "896")
    g.i("s_sub_u32", S(sTMP), S(sCT), "12")
    g.i("s_mul_i32", S(sCOLB), S(sTMP), "224")
    srd(g, SRD_W, P_W1, 0, 448 * 896)
    srd(g, SRD_O, P_WS, WS_H, 2 << 20)
    gemm_addr(g)
    ln_setup(g)
    gemm_loads(g)
    gemm_main(g, True, name + "b")
    ln_gelu_epilogue(g, SRD_O, 896)
    stamp(g, 7); prof_store(g, 0, 8)
    g.label(END)
    g.raw("    s_endpgm")
```

```python
from common import *
import common

GRID = 268
P8 = 1088
WREG = 16 * P8
LDS = 4 * WREG
NV, ACCOFF = 256, 256

sWAVE, sRB, sCT, sT = 3, 6, 7, 62
SRD_H, SRD_W, SRD_X, SRD_O, SRD_S, SRD_GW = 44, 48, 52, 56, 88, 92
vLANE, vM, vQ = 1, 3, 4
vBO, vDMA, vDMB, vTR, vXO, vL16 = 10, 14, 15, 16, 17, 18
BF = lambda rt, ks: 32 + (rt * 4 + ks) * 4
WFR = lambda ks, t: 96 + (ks * 4 + t) * 4
ACC = lambda rt, t: 160 + (rt * 4 + t) * 4
XR = 224
GWR = 232

def lane_ids(g):
    g.i("v_and_b32", V(vLANE), "63", "v0")
    g.i("v_lshrrev_b32", V(2), "6", "v0")
    g.i("v_readfirstlane_b32", S(sWAVE), V(2))
    g.i("v_and_b32", V(vM), "15", V(vLANE))
    g.i("v_lshrrev_b32", V(vQ), "4", V(vLANE))

def tile_ids(g):
    g.i("s_and_b32", "s4", "s2", "7")
    g.i("s_lshr_b32", "s5", "s2", "3")
    g.i("s_mul_i32", S(sT), "s5", "37")
    g.i("s_lshr_b32", S(sT), S(sT), "8")
    g.i("s_mul_i32", S(sT + 1), S(sT), "7")
    g.i("s_sub_u32", S(sCT), "s5", S(sT + 1))
    g.i("s_lshl_b32", S(sRB), "s4", "2")
    g.i("s_add_u32", S(sRB), S(sRB), S(sT))
    g.i("s_mov_b32", "s5", S(sT))

def unpack(g, dst, src):
    g.i("v_lshlrev_b32", V(dst), "16", V(src))
    g.i("v_and_b32", V(dst + 1), "0xffff0000", V(src))

def k2(g, name):
    kernel_begin(g, name)
    END = name + "_end"
    load_args(g)
    g.i("s_cmp_ge_u32", "s2", str(GRID))
    g.branch("s_cbranch_scc1", END)
    stamp(g, 0)
    lane_ids(g)
    g.i("s_cmp_ge_u32", "s2", "240")
    g.branch("s_cbranch_scc1", name + "_cs")
    snap_cs = g.snapshot()
    g.i("s_cmp_ge_u32", "s2", "224")
    g.branch("s_cbranch_scc1", name + "_red")
    snap_red = g.snapshot()
    tile_ids(g)
    g.i("v_lshrrev_b32", V(5), "3", V(vLANE))
    g.i("v_and_b32", V(6), "7", V(vLANE))
    g.i("s_lshl_b32", S(sT + 1), S(sCT), "7")
    g.i("v_lshl_add_u32", V(6), V(6), "4", S(sT + 1))
    g.i("v_mul_u32_u24", V(7), "896", V(5))
    g.i("v_add_u32", V(vDMA), V(7), V(6))
    g.i("v_min_u32", V(5), "3", V(5))
    g.i("v_mul_u32_u24", V(7), "896", V(5))
    g.i("v_add_u32", V(vDMB), V(7), V(6))
    g.i("s_mul_i32", S(sT + 2), S(sWAVE), str(WREG))
    g.i("s_mov_b32", "m0", S(sT + 2))
    g.i("s_mul_i32", S(8), S(sWAVE), str(112 * 896))
    g.i("s_lshr_b32", S(sT + 3), S(sWAVE), "1")
    g.i("s_add_u32", S(sT + 3), S(sT + 3), "1")
    g.i("s_sub_u32", S(sT + 4), "0", S(sT + 3))
    g.i("s_bitcmp1_b32", S(sWAVE), "0")
    g.i("s_cselect_b32", S(sT + 3), S(sT + 3), S(sT + 4))
    g.i("s_lshl_b32", S(sT + 4), S(sRB), "6")
    g.i("s_add_u32", S(sT + 3), S(sT + 3), S(sT + 4))
    g.i("v_add_u32", V(5), S(sT + 3), V(vM))
    g.i("v_ashrrev_i32", V(6), "4", V(5))
    g.i("v_lshlrev_b32", V(6), "14", V(6))
    g.i("v_and_b32", V(5), "15", V(5))
    g.i("v_lshl_add_u32", V(5), V(5), "4", V(6))
    g.i("v_lshl_add_u32", V(5), V(vQ), "8", V(5))
    g.i("s_lshl_b32", S(sT + 3), S(sWAVE), "12")
    g.i("v_add_u32", V(vBO), S(sT + 3), V(5))
    for rt in range(1, 4):
        g.i("v_add_u32", V(vBO + rt), str(rt * 16384), V(vBO))
    for rt in range(4):
        g.i("v_mov_b32", V(BF(rt, 3) + 2), "0")
        g.i("v_mov_b32", V(BF(rt, 3) + 3), "0")
    g.waitcnt(lg=0)
    srd(g, SRD_H, P_WS, WS_H, 2 << 20)
    srd(g, SRD_W, P_W2, 0, 448 * 896)
    for ks in range(4):
        for j in range(4):
            i = 4 * ks + j
            g.i("s_add_u32", S(9), S(8), str((28 * j + 8 * ks) * 896))
            g.i("buffer_load_dwordx4", V(vDMB if ks == 3 else vDMA), S(SRD_W, 4), S(9), mod="offen lds", tag=f"w{ks}")
            if i < 15:
                g.i("s_add_u32", "m0", "m0", str(P8))
        for rt in range(4):
            if ks < 3:
                g.i("buffer_load_dwordx4", V(BF(rt, ks), 4), V(vBO + rt), S(SRD_H, 4), "0", mod=f"offen offset:{1024 * ks}")
            else:
                g.i("buffer_load_dwordx2", V(BF(rt, ks), 2), V(vBO + rt), S(SRD_H, 4), "0", mod=f"offen offset:{1024 * ks}")
    srd(g, SRD_X, P_X, 0, 2048 * 896)
    srd(g, SRD_GW, P_GATE, 0, 896)
    srd(g, SRD_O, P_WS, WS_X1, 2048 * 896)
    srd(g, SRD_S, P_WS, WS_ST, 2048 * 128)
    g.i("s_lshl_b32", S(sT + 3), S(sWAVE), "4")
    g.i("s_add_u32", S(sT + 3), S(sT + 3), S(sT + 4))
    g.i("v_add_u32", V(19), S(sT + 3), V(vM))
    g.i("v_mul_u32_u24", V(5), "896", V(19))
    g.i("v_lshl_add_u32", V(6), V(vQ), "4", S(sT + 1))
    g.i("v_add_u32", V(vXO), V(6), V(5))
    for p in range(2):
        g.i("buffer_load_dwordx4", V(XR + 4 * p, 4), V(vXO), S(SRD_X, 4), "0", mod=f"offen offset:{64 * p}")
    for p in range(2):
        g.i("buffer_load_dwordx4", V(GWR + 4 * p, 4), V(6), S(SRD_GW, 4), "0", mod=f"offen offset:{64 * p}")
    g.i("v_bfe_u32", V(5), V(vLANE), "2", "2")
    g.i("v_and_b32", V(6), "3", V(vLANE))
    g.i("v_mul_u32_u24", V(7), str(P8), V(vQ))
    g.i("v_lshl_add_u32", V(7), V(5), "7", V(7))
    g.i("v_lshl_add_u32", V(7), V(6), "4", V(7))
    g.i("v_add_u32", V(vTR), S(sT + 2), V(7))
    g.i("v_lshlrev_b32", V(vL16), "4", V(vLANE))
    stamp(g, 2)
    for ks in range(4):
        g.wait_vm_tag(f"w{ks}")
        for t in range(4):
            for hf in range(2):
                g.i("ds_read_b64_tr_b16", V(WFR(ks, t) + 2 * hf, 2), V(vTR), mod=f"offset:{4 * ks * P8 + 512 * hf + 64 * (t >> 1) + 8 * (t & 1)}")
        for t in range(4):
            for rt in range(4):
                g.i(MFMA, V(ACC(rt, t), 4), V(WFR(ks, t), 4), V(BF(rt, ks), 4), "0" if ks == 0 else V(ACC(rt, t), 4))
    stamp(g, 3)
    g.barrier()
    g.i("s_lshl_b32", S(sT + 3), S(sWAVE), "12")
    g.i("v_add_u32", V(6), S(sT + 3), V(vL16))
    for rt in range(4):
        for t in range(4):
            g.i("ds_write_b128", V(6), V(ACC(rt, t), 4), mod=f"offset:{rt * 16384 + t * 1024}")
    g.i("s_lshl_b32", S(sT + 3), S(sWAVE), "14")
    g.i("v_add_u32", V(7), S(sT + 3), V(vL16))
    g.i("s_lshl_b32", S(8), S(sRB), "2")
    g.i("s_add_u32", S(8), S(8), S(sWAVE))
    g.i("s_mul_i32", S(8), S(8), "14")
    g.i("s_lshl_b32", S(9), S(sCT), "1")
    g.i("s_add_u32", S(8), S(8), S(9))
    g.i("s_lshl_b32", S(8), S(8), "10")
    GD = 20
    for j in range(8):
        g.i("v_dot2_f32_bf16", V(GD), V(XR + j), V(GWR + j), "0" if j == 0 else V(GD))
    XU = 96
    for j in range(8):
        unpack(g, XU + 2 * j, XR + j)
    g.waitcnt(lg=0)
    g.barrier()
    RD = 32
    for s in range(4):
        for t in range(4):
            g.i("ds_read_b128", V(RD + (s * 4 + t) * 4, 4), V(7), mod=f"offset:{s * 4096 + t * 1024}")
    for j in range(8):
        g.i("v_pk_add_f32", V(RD + 2 * j, 2), V(RD + 2 * j, 2), V(RD + 16 + 2 * j, 2))
        g.i("v_pk_add_f32", V(RD + 32 + 2 * j, 2), V(RD + 32 + 2 * j, 2), V(RD + 48 + 2 * j, 2))
    for j in range(8):
        g.i("v_pk_add_f32", V(RD + 2 * j, 2), V(RD + 2 * j, 2), V(RD + 32 + 2 * j, 2))
    PKR = 112
    for j in range(8):
        g.i("v_cvt_pk_bf16_f32", V(PKR + j), V(RD + 2 * j), V(RD + 2 * j + 1))
    for j in range(8):
        unpack(g, RD + 2 * j, PKR + j)
    for j in range(8):
        g.i("v_pk_add_f32", V(RD + 2 * j, 2), V(RD + 2 * j, 2), V(XU + 2 * j, 2))
    for j in range(8):
        g.i("v_cvt_pk_bf16_f32", V(PKR + j), V(RD + 2 * j), V(RD + 2 * j + 1))
    for p in range(2):
        g.i("buffer_store_dwordx4", V(PKR + 4 * p, 4), V(vL16), S(SRD_O, 4), S(8), mod=f"offen offset:{1024 * p}")
    S1, S2 = 21, 22
    g.i("v_mov_b32", V(23), "0x3f803f80")
    for j in range(8):
        g.i("v_dot2_f32_bf16", V(S1), V(PKR + j), V(23), "0" if j == 0 else V(S1))
        g.i("v_dot2_f32_bf16", V(S2), V(PKR + j), V(PKR + j), "0" if j == 0 else V(S2))
    for r in (S1, S2, GD):
        allreduce4(g, r, 24)
    g.i("v_cmp_eq_u32", "vcc", "1", V(vQ))
    g.i("v_cndmask_b32", V(S1), V(S1), V(S2), "vcc")
    g.i("v_cmp_eq_u32", "vcc", "2", V(vQ))
    g.i("v_cndmask_b32", V(S1), V(S1), V(GD), "vcc")
    g.i("v_lshlrev_b32", V(5), "7", V(19))
    g.i("v_lshl_add_u32", V(5), V(vQ), "5", V(5))
    g.i("s_lshl_b32", S(9), S(sCT), "2")
    g.i("buffer_store_dword", V(S1), V(5), S(SRD_S, 4), S(9), mod="offen")
    stamp(g, 4); prof_store(g, 1, 5)
    g.raw("    s_endpgm")
    g.restore(snap_red)
    g.label(name + "_red")
    g.waitcnt(lg=0)
    srd(g, SRD_H, P_WS, WS_KVP, 2 << 20)
    srd(g, SRD_O, P_WS, WS_KVF, 64 << 10)
    g.i("s_sub_u32", S(sT), "s2", "224")
    g.i("s_lshl_b32", S(sT), S(sT), "2")
    g.i("s_add_u32", S(sT), S(sT), S(sWAVE))
    g.i("s_lshl_b32", S(sT + 1), S(sT), "11")
    g.i("v_lshlrev_b32", V(5), "5", V(vLANE))
    for rb in range(16):
        for h in range(2):
            g.i("buffer_load_dwordx4", V(32 + 8 * rb + 4 * h, 4), V(5), S(SRD_H, 4), S(sT + 1), mod=f"offen offset:{16 * h}")
        if rb < 15:
            g.i("s_add_u32", S(sT + 1), S(sT + 1), str(131072))
    step = 8
    n = 16
    while n > 1:
        for i in range(0, n, 2):
            for j in range(4):
                a = 32 + step * i + 2 * j
                g.i("v_pk_add_f32", V(a, 2), V(a, 2), V(a + step, 2))
        n //= 2
        step *= 2
    for j in range(4):
        g.i("v_cvt_pk_bf16_f32", V(8 + j), V(32 + 2 * j), V(33 + 2 * j))
    g.i("s_bitcmp1_b32", S(sWAVE), "0")
    g.i("s_cselect_b32", S(sT + 2), "3", "7")
    g.i("v_cmp_eq_u32", "vcc", S(sT + 2), V(vQ))
    for j in range(4):
        g.i("v_cndmask_b32", V(8 + j), V(8 + j), "0", "vcc")
    g.i("s_lshl_b32", S(sT + 1), S(sT), "10")
    g.i("v_lshlrev_b32", V(5), "4", V(vLANE))
    g.i("buffer_store_dwordx4", V(8, 4), V(5), S(SRD_O, 4), S(sT + 1), mod="offen")
    stamp(g, 2); prof_store(g, 1, 3)
    g.raw("    s_endpgm")
    g.restore(snap_cs)
    g.label(name + "_cs")
    g.i("v_lshrrev_b32", V(5), "3", V(vLANE))
    g.i("v_and_b32", V(6), "7", V(vLANE))
    g.i("v_mul_u32_u24", V(5), "3584", V(5))
    g.i("v_lshl_add_u32", V(5), V(6), "4", V(5))
    g.i("s_sub_u32", S(sT), "s2", "240")
    g.i("s_lshl_b32", S(sT + 1), S(sT), "7")
    g.i("s_mul_i32", S(sT + 2), S(sWAVE), str(112 * 3584))
    g.i("s_add_u32", S(sT + 1), S(sT + 1), S(sT + 2))
    g.waitcnt(lg=0)
    srd(g, SRD_W, P_W3, 0, 448 * 3584)
    srd(g, SRD_O, P_WS, WS_CS3, 1792 * 4)
    for i in range(14):
        g.i("buffer_load_dwordx4", V(32 + 4 * i, 4), V(5), S(SRD_W, 4), S(sT + 1), mod="offen")
        if i < 13:
            g.i("s_add_u32", S(sT + 1), S(sT + 1), str(8 * 3584))
    g.i("v_mov_b32", V(8), "0x00003f80")
    g.i("v_mov_b32", V(9), "0x3f800000")
    AC = 16
    for i in range(14):
        for j in range(4):
            g.i("v_dot2_f32_bf16", V(AC + 2 * j), V(32 + 4 * i + j), V(8), "0" if i == 0 else V(AC + 2 * j))
            g.i("v_dot2_f32_bf16", V(AC + 2 * j + 1), V(32 + 4 * i + j), V(9), "0" if i == 0 else V(AC + 2 * j + 1))
    for j in range(8):
        g.i("v_add_f32", V(AC + j), V(AC + j), V(AC + j), mod="row_ror:8 row_mask:0xf bank_mask:0xf")
        allreduce4(g, AC + j, 24)
    g.i("s_lshl_b32", S(sT + 2), S(sWAVE), "8")
    g.i("v_lshl_add_u32", V(7), V(6), "5", S(sT + 2))
    g.i("ds_write_b128", V(7), V(AC, 4))
    g.i("ds_write_b128", V(7), V(AC + 4, 4), mod="offset:16")
    g.i("v_lshlrev_b32", V(7), "2", V(vLANE))
    g.waitcnt(lg=0)
    g.barrier()
    for w in range(4):
        g.i("ds_read_b32", V(32 + w), V(7), mod=f"offset:{256 * w}")
    g.i("v_add_f32", V(32), V(32), V(33))
    g.i("v_add_f32", V(34), V(34), V(35))
    g.i("v_add_f32", V(32), V(32), V(34))
    g.i("s_lshl_b32", S(sT + 1), S(sT), "8")
    g.i("buffer_store_dword", V(32), V(7), S(SRD_O, 4), S(sT + 1), mod="offen")
    stamp(g, 2); prof_store(g, 1, 3)
    g.label(END)
    g.raw("    s_endpgm")
```

```python
from common import *
import common
from k2 import lane_ids

LDS = 14 * 8192
GRID = 256
sWAVE, sRB, sCT, sKS, sWO, sXB, sA, sB, sM0 = 3, 6, 7, 8, 9, 10, 11, 12, 13
sT = 62
SRD_X, SRD_W, SRD_O, SRD_S, SRD_C = 44, 48, 52, 56, 88
vLANE, vM, vQ = 1, 3, 4
vDMA, vX0, vX1 = 5, 6, 7
vTA = 8
XF = lambda rt, u: 16 + (rt * 14 + u) * 4
ACC = lambda rt, t: 128 + (rt * 8 + t) * 4
CSV = 192
STV = 224
vSO = 232
WF = lambda buf, t: (buf * 8 + t) * 4
PDK = 5

def step_loads(g, u):
    def d0():
        g.i("s_mul_i32", S(sA), S(sKS), str(32 * 3584))
        g.i("s_add_u32", S(sA), S(sA), S(sWO))
        g.i("s_lshl_b32", S(sB), S(sKS), "10")
        g.i("s_add_u32", S(sB), S(sB), S(sXB))
        g.i("s_add_u32", "m0", S(sM0), str(u * 8192))
        g.i("s_add_u32", S(sKS), S(sKS), "1")
        g.i("buffer_load_dwordx4", V(vDMA), S(SRD_W, 4), S(sA), mod="offen lds", tag=f"k{u}")
        g.i("s_cmp_eq_u32", S(sKS), "14")
        g.i("s_cselect_b32", S(sKS), "0", S(sKS))
    def d1():
        g.i("s_add_u32", "m0", "m0", "1024")
        g.i("s_add_u32", S(sA), S(sA), str(4 * 3584))
        g.i("buffer_load_dwordx4", V(vDMA), S(SRD_W, 4), S(sA), mod="offen lds", tag=f"k{u}")
    def x0():
        g.i("buffer_load_dwordx4", V(XF(0, u), 4), V(vX0), S(SRD_X, 4), S(sB), mod="offen", tag=f"k{u}")
    def x1():
        g.i("buffer_load_dwordx4", V(XF(1, u), 4), V(vX1), S(SRD_X, 4), S(sB), mod="offen", tag=f"k{u}")
    return [d0, d1, x0, x1]

def w_reads(u):
    u0 = u if u < 7 else u - 7
    return [("ds_read_b64_tr_b16", A(WF(u & 1, t) + 2 * hf, 2), V(vTA + t), f"offset:{u0 * 8192 + hf * 1024}")
            for t in range(8) for hf in range(2)]

def k3(g, name):
    kernel_begin(g, name)
    END = name + "_end"
    load_args(g)
    g.i("s_cmp_ge_u32", "s2", str(GRID))
    g.branch("s_cbranch_scc1", END)
    stamp(g, 0)
    lane_ids(g)
    g.i("s_cmp_ge_u32", "s2", "224")
    g.branch("s_cbranch_scc1", name + "_o")
    snap_o = g.snapshot()
    g.i("s_and_b32", "s4", "s2", "7")
    g.i("s_lshr_b32", "s5", "s2", "3")
    g.i("s_mul_i32", S(sT), "s5", "37")
    g.i("s_lshr_b32", S(sT), S(sT), "8")
    g.i("s_mul_i32", S(sT + 1), S(sT), "7")
    g.i("s_sub_u32", S(sT + 1), "s5", S(sT + 1))
    g.i("s_lshr_b32", S(sRB), "s4", "1")
    g.i("s_lshl_b32", S(sRB), S(sRB), "2")
    g.i("s_add_u32", S(sRB), S(sRB), S(sT))
    g.i("s_and_b32", S(sCT), "s4", "1")
    g.i("s_mul_i32", S(sCT), S(sCT), "7")
    g.i("s_add_u32", S(sCT), S(sCT), S(sT + 1))
    g.i("s_lshl_b32", S(sKS), S(sT + 1), "1")
    g.i("s_mul_i32", S(sT + 2), S(sT), "3")
    g.i("s_add_u32", S(sKS), S(sKS), S(sT + 2))
    g.i("s_sub_u32", S(sT + 2), S(sKS), "14")
    g.i("s_cmp_ge_u32", S(sKS), "14")
    g.i("s_cselect_b32", S(sKS), S(sT + 2), S(sKS))
    g.i("s_mul_i32", S(sWO), S(sWAVE), str(8 * 3584))
    g.i("s_lshl_b32", S(sM0), S(sWAVE), "11")
    g.i("s_lshl_b32", S(sT + 3), S(sRB), "3")
    g.i("s_lshl_b32", S(sT + 4), S(sWAVE), "1")
    g.i("s_add_u32", S(sT + 3), S(sT + 3), S(sT + 4))
    g.i("s_mul_i32", S(sXB), S(sT + 3), "14336")
    g.i("s_and_b32", S(sT + 4), S(sWAVE), "1")
    g.i("v_lshl_add_u32", V(8), V(vQ), "1", S(sT + 4))
    g.i("v_lshrrev_b32", V(9), "1", V(vM))
    g.i("v_xor_b32", V(8), V(8), V(9))
    g.i("v_and_b32", V(9), "1", V(vM))
    g.i("v_lshlrev_b32", V(9), "4", V(9))
    g.i("v_lshl_add_u32", V(8), V(8), "5", V(9))
    g.i("v_mul_u32_u24", V(9), "3584", V(vQ))
    g.i("s_lshl_b32", S(sT + 4), S(sCT), "8")
    g.i("v_add3_u32", V(vDMA), V(8), V(9), S(sT + 4))
    g.i("v_lshlrev_b32", V(vX0), "4", V(vLANE))
    g.i("v_add_u32", V(vX1), "14336", V(vX0))
    g.waitcnt(lg=0)
    srd(g, SRD_W, P_W3, 0, 448 * 3584)
    srd(g, SRD_X, P_WS, WS_X1, 2048 * 896)
    for u in range(PDK):
        for f in step_loads(g, u): f()
    srd(g, SRD_O, P_WS, WS_H3, 2048 * 3584)
    srd(g, SRD_S, P_WS, WS_ST, 2048 * 128)
    srd(g, SRD_C, P_WS, WS_CS3, 1792 * 4)
    T0, T1, T2 = 240, 241, 242
    g.i("v_bfe_u32", V(T0), V(vLANE), "2", "2")
    g.i("v_and_b32", V(T1), "1", V(vQ))
    g.i("v_lshl_add_u32", V(T1), V(T0), "1", V(T1))
    g.i("v_lshlrev_b32", V(T2), "11", V(vQ))
    g.i("v_lshl_add_u32", V(T2), V(T0), "8", V(T2))
    g.i("v_and_b32", V(T0), "3", V(vLANE))
    g.i("v_lshl_add_u32", V(T2), V(T0), "3", V(T2))
    for t in range(8):
        g.i("v_xor_b32", V(T0), str(t), V(T1))
        g.i("v_lshl_add_u32", V(vTA + t), V(T0), "5", V(T2))
    g.i("s_lshl_b32", S(sT + 4), S(sT + 3), "11")
    g.i("v_lshlrev_b32", V(T0), "7", V(vM))
    g.i("v_lshl_add_u32", V(T0), V(vQ), "4", V(T0))
    g.i("v_add_u32", V(vSO), S(sT + 4), V(T0))
    g.i("s_lshl_b32", S(sT + 4), S(sCT), "9")
    g.i("v_lshl_add_u32", V(vSO + 1), V(vQ), "4", S(sT + 4))
    g.i("s_mul_i32", S(14), S(sT + 3), "57344")
    g.i("s_lshl_b32", S(sT + 4), S(sCT), "12")
    g.i("s_add_u32", S(14), S(14), S(sT + 4))
    g.i("s_add_u32", S(15), S(14), "57344")
    stamp(g, 2)
    g.wait_vm_tag("k1")
    g.barrier()
    stamp(g, 3)
    for r in w_reads(0):
        g.i(r[0], r[1], r[2], mod=r[3])
    extra = []
    for rt in range(2):
        extra.append(lambda rt=rt: g.i("buffer_load_dwordx4", V(STV + 4 * rt, 4), V(vSO), S(SRD_S, 4), "0", mod=f"offen offset:{2048 * rt}"))
    for t in range(8):
        extra.append(lambda t=t: g.i("buffer_load_dwordx4", V(CSV + 4 * t, 4), V(vSO + 1), S(SRD_C, 4), "0", mod=f"offen offset:{64 * t}"))
    for u in range(14):
        buf = u & 1
        mf = [(t, rt) for t in range(8) for rt in range(2)]
        rd = w_reads(u + 1) if u < 13 else []
        if u + PDK < 14:
            lds = step_loads(g, u + PDK)
        else:
            lds = extra[:4]; extra = extra[4:]
        newstage = u < 13 and (u & 1) == 1
        nfirst = 6 if newstage else 0
        for n, (t, rt) in enumerate(mf):
            if newstage and n == nfirst:
                g.wait_vm_tag(f"k{u + 2}")
                g.barrier()
                if u in (5, 11): stamp(g, 4 if u == 5 else 5)
            if u == 6 and n == 0:
                pass
            g.i(MFMA, V(ACC(rt, t), 4), A(WF(buf, t), 4), V(XF(rt, u), 4), "0" if u == 0 else V(ACC(rt, t), 4))
            if u == 6 and n < 8:
                g.i("v_add_u32", V(vTA + n), str(7 * 8192), V(vTA + n))
            lo = 8 if u == 6 else nfirst
            if n >= lo:
                left = len(mf) - n
                k = -(-len(rd) // left)
                for r in rd[:k]:
                    g.i(r[0], r[1], r[2], mod=r[3])
                rd = rd[k:]
            if lds and n % 4 == 1:
                lds.pop(0)()
        assert not lds
    stamp(g, 6)
    MEAN, C0, C1, SD = 16, 20, 24, 28
    g.i("v_and_b32", V(T0), "1", V(vQ))
    g.i("v_cmp_eq_u32", "vcc", "1", V(T0))
    for rt in range(2):
        s = STV + 4 * rt
        g.i("v_cndmask_b32", V(s + 3), V(s + 3), "0", "vcc")
        g.i("v_add_f32", V(s), V(s), V(s + 1))
        g.i("v_add_f32", V(s + 2), V(s + 2), V(s + 3))
        g.i("v_add_f32", V(s), V(s), V(s + 2))
        g.i("v_mov_b32", V(s + 1), V(s))
        g.i("v_permlane16_swap_b32", V(s + 1), V(s))
        g.i("v_add_f32", V(s), V(s), V(s + 1))
        g.i("v_mov_b32", V(s + 1), V(s))
        g.i("v_permlane32_swap_b32", V(s), V(s + 1))
        q2 = s + 1
        g.i("v_mul_f32", V(s), f32(1.0 / 448), V(s))
        g.i("v_mul_f32", V(q2), f32(1.0 / 448), V(q2))
        g.i("v_fma_f32", V(q2), "-" + V(s), V(s), V(q2))
        g.i("v_max_f32", V(q2), "0", V(q2))
        round_bf16(g, s)
        round_bf16(g, q2)
        g.i("v_add_f32", V(q2), f32(1e-5), V(q2))
        round_bf16(g, q2)
        g.i("v_sqrt_f32", V(q2), V(q2))
        round_bf16(g, q2)
        rs = s + 2
        g.i("v_rcp_f32", V(rs), V(q2))
        g.i("v_mul_f32", V(MEAN + 2 * rt), "-1.0", V(s))
        g.i("v_mov_b32", V(MEAN + 2 * rt + 1), V(MEAN + 2 * rt))
        g.i("v_mov_b32", V(SD + 2 * rt), V(q2))
        g.i("v_mov_b32", V(SD + 2 * rt + 1), V(q2))
        g.i("v_mul_f32", V(C0 + 2 * rt), f32(GC0), V(rs))
        g.i("v_mov_b32", V(C0 + 2 * rt + 1), V(C0 + 2 * rt))
        g.i("v_mul_f32", V(s + 3), V(rs), V(rs))
        g.i("v_mul_f32", V(s + 3), V(s + 3), V(rs))
        g.i("v_mul_f32", V(C1 + 2 * rt), f32(GC1), V(s + 3))
        g.i("v_mov_b32", V(C1 + 2 * rt + 1), V(C1 + 2 * rt))
    for rt in range(2):
        U, Z, PK = 32, 64, 96 + 16 * rt
        for p in range(16):
            a = V(ACC(rt, 0) + 2 * p, 2)
            g.i("v_pk_fma_f32", V(U + 2 * p, 2), V(CSV + 2 * p, 2), V(MEAN + 2 * rt, 2), a)
        for p in range(16):
            g.i("v_pk_mul_f32", V(Z + 2 * p, 2), V(U + 2 * p, 2), V(U + 2 * p, 2))
        for p in range(16):
            g.i("v_pk_fma_f32", V(Z + 2 * p, 2), V(Z + 2 * p, 2), V(C1 + 2 * rt, 2), V(C0 + 2 * rt, 2))
        for p in range(16):
            g.i("v_pk_mul_f32", V(Z + 2 * p, 2), V(Z + 2 * p, 2), V(U + 2 * p, 2))
        for e in range(32):
            g.i("v_exp_f32", V(Z + e), V(Z + e))
        for p in range(16):
            g.i("v_pk_fma_f32", V(Z + 2 * p, 2), V(Z + 2 * p, 2), V(SD + 2 * rt, 2), V(SD + 2 * rt, 2))
        for e in range(32):
            g.i("v_rcp_f32", V(Z + e), V(Z + e))
        for p in range(16):
            g.i("v_pk_mul_f32", V(U + 2 * p, 2), V(U + 2 * p, 2), V(Z + 2 * p, 2))
        for p in range(16):
            g.i("v_cvt_pk_bf16_f32", V(PK + p), V(U + 2 * p), V(U + 2 * p + 1))
        for pp in range(4):
            g.i("buffer_store_dwordx4", V(PK + 4 * pp, 4), V(vX0), S(SRD_O, 4), S(14 + rt), mod=f"offen offset:{1024 * pp}")
    stamp(g, 7); prof_store(g, 2, 8)
    g.raw("    s_endpgm")
    g.restore(snap_o)
    g.label(name + "_o")
    SRD_Q, SRD_KV, SRD_OO = 44, 48, 52
    g.i("s_sub_u32", S(sT), "s2", "224")
    g.i("s_and_b32", S(sT + 1), S(sT), "3")
    g.i("s_lshl_b32", S(sT + 1), S(sT + 1), "2")
    g.i("s_add_u32", S(sT + 1), S(sT + 1), S(sWAVE))
    g.i("s_lshr_b32", S(sT + 2), S(sT), "2")
    g.i("s_lshl_b32", S(sT + 2), S(sT + 2), "8")
    g.i("s_add_u32", S(sT + 2), S(sT + 2), S(sT + 1))
    g.i("s_lshl_b32", S(8), S(sT + 1), "12")
    g.i("s_lshl_b32", S(9), S(sT + 2), "11")
    g.i("s_lshl_b32", S(10), S(sT + 2), "10")
    g.i("v_lshlrev_b32", V(5), "4", V(vLANE))
    g.i("v_mov_b32", V(7), "0x7f000000")
    g.i("v_cmp_eq_u32", "vcc", "3", V(vQ))
    g.i("v_cndmask_b32", V(6), V(5), V(7), "vcc")
    g.waitcnt(lg=0)
    srd(g, SRD_Q, P_WS, WS_PHIQ, 4 << 20)
    srd(g, SRD_KV, P_WS, WS_KVF, 64 << 10)
    srd(g, SRD_OO, P_WS, WS_O, 2 << 20)
    KF = lambda td, p: 16 + 4 * (2 * td + p)
    QF = lambda i, p: 32 + 4 * (2 * i + p)
    for td in range(2):
        for p in range(2):
            g.i("buffer_load_dwordx4", V(KF(td, p), 4), V(5), S(SRD_KV, 4), S(8), mod=f"offen offset:{1024 * (2 * td + p)}")
    for i in range(16):
        g.i("buffer_load_dwordx4", V(QF(i, 0), 4), V(5), S(SRD_Q, 4), S(9), mod="offen")
        g.i("buffer_load_dwordx4", V(QF(i, 1), 4), V(6), S(SRD_Q, 4), S(9), mod="offen offset:1024")
        if i < 15:
            g.i("s_add_u32", S(9), S(9), str(16 * 2048))
    for i in range(16):
        b = 160 + 8 * (i & 3)
        for td in range(2):
            for p in range(2):
                d = V(b + 4 * td, 4)
                g.i(MFMA, d, V(KF(td, p), 4), V(QF(i, p), 4), "0" if p == 0 else d)
        if (i & 3) != 3: continue
        for ii in range(i - 3, i + 1):
            b = 160 + 8 * (ii & 3)
            den = b + 7
            round_bf16(g, den)
            g.i("v_add_f32", V(den), f32(1e-6), V(den))
            round_bf16(g, den)
            g.i("v_rcp_f32", V(den), V(den))
            PKO = 192 + 4 * (ii & 7)
            for j in range(4):
                g.i("v_cvt_pk_bf16_f32", V(PKO + j), V(b + 2 * j), V(b + 2 * j + 1))
            for j in range(4):
                g.i("v_lshlrev_b32", V(b + 2 * j), "16", V(PKO + j))
                if j < 3:
                    g.i("v_and_b32", V(b + 2 * j + 1), "0xffff0000", V(PKO + j))
            for j in range(7):
                g.i("v_mul_f32", V(b + j), V(b + j), V(den))
            g.i("v_mov_b32", V(den), "0")
            for j in range(4):
                g.i("v_cvt_pk_bf16_f32", V(PKO + j), V(b + 2 * j), V(b + 2 * j + 1))
            g.i("buffer_store_dwordx4", V(PKO, 4), V(5), S(SRD_OO, 4), S(10), mod="offen")
            if ii < 15:
                g.i("s_add_u32", S(10), S(10), str(16 * 1024))
    stamp(g, 2); prof_store(g, 2, 3)
    g.label(END)
    g.raw("    s_endpgm")
```

```python
from common import *
import common
from k2 import lane_ids, tile_ids, unpack

GRID = 224
P8 = 1088
RING = 6
SLOT = 4 * P8
WREG = 32768
LDS = 4 * WREG
NV, ACCOFF = 512, 256
PD = 5
NU = 18

sWAVE, sRB, sCT, sT = 3, 6, 7, 62
sW4, sWO, sOB, sLB, sKS, sHB, sA, sB = 8, 9, 10, 11, 12, 13, 14, 15
SRD_H, SRD_W4, SRD_X, SRD_OUT, SRD_WO, SRD_OF, SRD_G = 44, 48, 52, 56, 88, 92, 84
vLANE, vM, vQ = 1, 3, 4
vBO, vDMA, vDMO, vTR, vXO, vL16, vGO = 10, 14, 15, 16, 17, 18, 19
BF = lambda slot, rt: (slot * 4 + rt) * 4
WFR = lambda buf, t: 32 + (buf * 4 + t) * 4
ACC = lambda st, rt, t: 64 + ((st * 4 + rt) * 4 + t) * 4
XR = 192
GR = 200

def unit_loads(g, u):
    slot = u % RING
    ops = []
    def dma(j):
        def f():
            if j == 0:
                g.i("s_add_u32", "m0", S(sLB), str(slot * SLOT))
                if u < 14:
                    g.i("s_mul_i32", S(sA), S(sKS), str(32 * 896))
                    g.i("s_add_u32", S(sA), S(sA), S(sW4))
                    g.i("s_lshl_b32", S(sB), S(sKS), "10")
                    g.i("s_add_u32", S(sB), S(sB), S(sHB))
                    g.i("s_add_u32", S(sKS), S(sKS), "1")
                    g.i("s_cmp_eq_u32", S(sKS), "14")
                    g.i("s_cselect_b32", S(sKS), "0", S(sKS))
            else:
                g.i("s_add_u32", "m0", "m0", str(P8))
            if u < 14:
                g.i("buffer_load_dwordx4", V(vDMA), S(SRD_W4, 4), S(sA), mod="offen lds", tag=f"u{u}")
                if j < 3: g.i("s_add_u32", S(sA), S(sA), str(4 * 896))
            else:
                g.i("buffer_load_dwordx4", V(vDMO), S(SRD_WO, 4), S(sWO), mod="offen lds", tag=f"u{u}")
                g.i("s_add_u32", S(sWO), S(sWO), str(7 * 896))
        return f
    def bl(rt):
        def f():
            if u < 14:
                g.i("buffer_load_dwordx4", A(BF(slot, rt), 4), V(vBO + rt), S(SRD_H, 4), S(sB), mod="offen", tag=f"u{u}")
            else:
                g.i("s_add_u32", S(sT), S(sOB), str(rt * 16384 + (u - 14) * 1024))
                g.i("buffer_load_dwordx4", A(BF(slot, rt), 4), V(vL16), S(SRD_OF, 4), S(sT), mod="offen", tag=f"u{u}")
        return f
    for j in range(4): ops.append(dma(j))
    for rt in range(4): ops.append(bl(rt))
    return ops

def w_reads(g, u):
    slot = u % RING
    for t in range(4):
        for hf in range(2):
            g.i("ds_read_b64_tr_b16", V(WFR(u & 1, t) + 2 * hf, 2), V(vTR), mod=f"offset:{slot * SLOT + 512 * hf + 64 * (t >> 1) + 8 * (t & 1)}")

def k4(g, name):
    kernel_begin(g, name)
    END = name + "_end"
    load_args(g)
    g.i("s_cmp_ge_u32", "s2", str(GRID))
    g.branch("s_cbranch_scc1", END)
    stamp(g, 0)
    lane_ids(g)
    tile_ids(g)
    g.i("s_lshl_b32", S(sKS), S(sCT), "1")
    g.i("s_mul_i32", S(sT + 2), "s5", "3")
    g.i("s_add_u32", S(sKS), S(sKS), S(sT + 2))
    g.i("s_sub_u32", S(sT + 2), S(sKS), "14")
    g.i("s_cmp_ge_u32", S(sKS), "14")
    g.i("s_cselect_b32", S(sKS), S(sT + 2), S(sKS))
    g.i("v_lshrrev_b32", V(5), "3", V(vLANE))
    g.i("v_and_b32", V(6), "7", V(vLANE))
    g.i("s_lshl_b32", S(sT + 1), S(sCT), "7")
    g.i("v_lshl_add_u32", V(6), V(6), "4", S(sT + 1))
    g.i("v_lshrrev_b32", V(7), "2", V(5))
    g.i("v_and_b32", V(8), "3", V(5))
    g.i("v_lshl_add_u32", V(7), V(7), "4", V(8))
    g.i("v_mul_u32_u24", V(7), "896", V(7))
    g.i("v_add_u32", V(vDMA), V(7), V(6))
    g.i("v_min_u32", V(5), "6", V(5))
    g.i("v_mul_u32_u24", V(7), "896", V(5))
    g.i("v_add_u32", V(vDMO), V(7), V(6))
    g.i("s_mul_i32", S(sW4), S(sWAVE), str(448 * 896))
    g.i("s_mul_i32", S(sWO), S(sWAVE), str(112 * 896))
    g.i("s_mul_i32", S(sLB), S(sWAVE), str(WREG))
    g.i("s_lshl_b32", S(sOB), S(sRB), "16")
    g.i("s_lshl_b32", S(sT), S(sWAVE), "12")
    g.i("s_add_u32", S(sOB), S(sOB), S(sT))
    g.i("v_lshlrev_b32", V(vL16), "4", V(vLANE))
    g.i("s_mul_i32", S(sHB), S(sRB), str(4 * 57344))
    g.i("s_mul_i32", S(sT), S(sWAVE), str(14 * 1024))
    g.i("s_add_u32", S(sHB), S(sHB), S(sT))
    for rt in range(4):
        g.i("v_add_u32", V(vBO + rt), str(rt * 57344), V(vL16))
    g.waitcnt(lg=0)
    srd(g, SRD_H, P_WS, WS_H3, 2048 * 3584)
    srd(g, SRD_W4, P_W4, 0, 1792 * 896)
    for u in range(PD):
        for f in unit_loads(g, u): f()
    srd(g, SRD_WO, P_WO, 0, 448 * 896)
    srd(g, SRD_X, P_WS, WS_X1, 2048 * 896)
    srd(g, SRD_OF, P_WS, WS_O, 2 << 20)
    srd(g, SRD_G, P_WS, WS_ST, 2048 * 128)
    srd(g, SRD_OUT, P_OUT, 0, 2048 * 896)
    g.i("v_bfe_u32", V(5), V(vLANE), "2", "2")
    g.i("v_and_b32", V(6), "3", V(vLANE))
    g.i("v_mul_u32_u24", V(7), str(P8), V(vQ))
    g.i("v_lshl_add_u32", V(7), V(5), "7", V(7))
    g.i("v_lshl_add_u32", V(7), V(6), "4", V(7))
    g.i("v_add_u32", V(vTR), S(sLB), V(7))
    g.i("s_lshl_b32", S(sT + 4), S(sRB), "6")
    g.i("s_lshl_b32", S(sT + 3), S(sWAVE), "4")
    g.i("s_add_u32", S(sT + 3), S(sT + 3), S(sT + 4))
    g.i("v_add_u32", V(5), S(sT + 3), V(vM))
    g.i("v_and_b32", V(6), "1", V(vQ))
    g.i("v_lshlrev_b32", V(6), "4", V(6))
    g.i("v_lshl_add_u32", V(vGO), V(5), "7", V(6))
    g.i("v_mul_u32_u24", V(5), "896", V(5))
    g.i("v_lshl_add_u32", V(5), V(vQ), "4", V(5))
    g.i("v_add_u32", V(vXO), S(sT + 1), V(5))
    g.i("s_lshl_b32", S(69), S(sRB), "2")
    g.i("s_add_u32", S(69), S(69), S(sWAVE))
    g.i("s_mul_i32", S(69), S(69), "14")
    g.i("s_lshl_b32", S(sT + 3), S(sCT), "1")
    g.i("s_add_u32", S(69), S(69), S(sT + 3))
    g.i("s_lshl_b32", S(69), S(69), "10")
    stamp(g, 2)
    g.wait_vm_tag("u0")
    w_reads(g, 0)
    for u in range(NU):
        st = 0 if u < 14 else 1
        slot = u % RING
        if u + 1 < NU:
            g.wait_vm_tag(f"u{u + 1}")
            w_reads(g, u + 1)
        lds = unit_loads(g, u + PD) if u + PD < NU else []
        if u == NU - PD:
            def xl():
                for p in range(2):
                    g.i("buffer_load_dwordx4", V(XR + 4 * p, 4), V(vL16), S(SRD_X, 4), S(69), mod=f"offen offset:{1024 * p}")
                g.i("buffer_load_dwordx4", V(GR, 4), V(vGO), S(SRD_G, 4), "0", mod="offen offset:64")
            lds = [xl]
        first = u in (0, 14)
        n = 0
        for t in range(4):
            for rt in range(4):
                g.i(MFMA, V(ACC(st, rt, t), 4), V(WFR(u & 1, t), 4), A(BF(slot, rt), 4), "0" if first else V(ACC(st, rt, t), 4))
                n += 1
                if lds and n % 2 == 1:
                    lds.pop(0)()
        assert not lds
    stamp(g, 3)
    g.barrier()
    g.i("s_lshl_b32", S(sT + 3), S(sWAVE), "13")
    g.i("v_add_u32", V(6), S(sT + 3), V(vL16))
    g.i("v_add_u32", V(8), "65536", V(6))
    for rt in range(4):
        for st in range(2):
            for t in range(4):
                g.i("ds_write_b128", V(6 if rt < 2 else 8), V(ACC(st, rt, t), 4), mod=f"offset:{(rt & 1) * 32768 + st * 4096 + t * 1024}")
    g.i("s_lshl_b32", S(sT + 3), S(sWAVE), "15")
    g.i("v_add_u32", V(7), S(sT + 3), V(vL16))
    XU = 32
    for j in range(8):
        unpack(g, XU + 2 * j, XR + j)
    G2, OM = 204, 206
    g.i("v_and_b32", V(5), "1", V(vQ))
    g.i("v_cmp_eq_u32", "vcc", "1", V(5))
    g.i("v_cndmask_b32", V(GR + 3), V(GR + 3), "0", "vcc")
    g.i("v_add_f32", V(GR), V(GR), V(GR + 1))
    g.i("v_add_f32", V(GR + 2), V(GR + 2), V(GR + 3))
    g.i("v_add_f32", V(GR), V(GR), V(GR + 2))
    g.i("v_mov_b32", V(GR + 1), V(GR))
    g.i("v_permlane16_swap_b32", V(GR + 1), V(GR))
    g.i("v_add_f32", V(GR), V(GR), V(GR + 1))
    round_bf16(g, GR)
    g.i("v_mul_f32", V(GR), f32(-LOG2E), V(GR))
    g.i("v_exp_f32", V(GR), V(GR))
    g.i("v_add_f32", V(GR), "1.0", V(GR))
    g.i("v_rcp_f32", V(GR), V(GR))
    round_bf16(g, GR)
    g.i("v_sub_f32", V(OM), "1.0", V(GR))
    round_bf16(g, OM)
    g.i("v_mov_b32", V(OM + 1), V(OM))
    g.i("v_mov_b32", V(G2), V(GR))
    g.i("v_mov_b32", V(G2 + 1), V(GR))
    g.waitcnt(lg=0)
    g.barrier()
    RD = 64
    for s in range(4):
        for q in range(8):
            g.i("ds_read_b128", V(RD + (s * 8 + q) * 4, 4), V(7), mod=f"offset:{s * 8192 + q * 1024}")
    for j in range(16):
        g.i("v_pk_add_f32", V(RD + 2 * j, 2), V(RD + 2 * j, 2), V(RD + 32 + 2 * j, 2))
        g.i("v_pk_add_f32", V(RD + 64 + 2 * j, 2), V(RD + 64 + 2 * j, 2), V(RD + 96 + 2 * j, 2))
    for j in range(16):
        g.i("v_pk_add_f32", V(RD + 2 * j, 2), V(RD + 2 * j, 2), V(RD + 64 + 2 * j, 2))
    PKR = 112
    def rnd(base, n):
        for j in range(n):
            g.i("v_cvt_pk_bf16_f32", V(PKR + j), V(base + 2 * j), V(base + 2 * j + 1))
        for j in range(n):
            unpack(g, base + 2 * j, PKR + j)
    rnd(RD, 16)
    for j in range(8):
        g.i("v_pk_add_f32", V(RD + 2 * j, 2), V(RD + 2 * j, 2), V(XU + 2 * j, 2))
        g.i("v_pk_mul_f32", V(RD + 16 + 2 * j, 2), V(RD + 16 + 2 * j, 2), V(G2, 2))
    rnd(RD, 16)
    for j in range(8):
        g.i("v_pk_mul_f32", V(RD + 2 * j, 2), V(RD + 2 * j, 2), V(OM, 2))
    rnd(RD, 8)
    for j in range(8):
        g.i("v_pk_add_f32", V(RD + 2 * j, 2), V(RD + 2 * j, 2), V(RD + 16 + 2 * j, 2))
    for j in range(8):
        g.i("v_cvt_pk_bf16_f32", V(PKR + j), V(RD + 2 * j), V(RD + 2 * j + 1))
    for p in range(2):
        g.i("buffer_store_dwordx4", V(PKR + 4 * p, 4), V(vXO), S(SRD_OUT, 4), "0", mod=f"offen offset:{64 * p}")
    stamp(g, 4); prof_store(g, 3, 5)
    g.label(END)
    g.raw("    s_endpgm")
```

```python
from asmlib import *
import struct

def f32(x):
    return "0x%08x" % struct.unpack("<I", struct.pack("<f", x))[0]

LOG2E = 1.4426950408889634
GC0 = -2.0 * 0.7978845608028654 * LOG2E
GC1 = GC0 * 0.044715

WS_H = 0
WS_PHIQ = 2 << 20
WS_KVP = 6 << 20
WS_KVF = 8 << 20
WS_ST = (8 << 20) + (256 << 10)
WS_CS3 = (8 << 20) + (768 << 10)
WS_X1 = 9 << 20
WS_H3 = 11 << 20
WS_O = 19 << 20

P_X, P_WQKV, P_PHI, P_WO, P_BX, P_W1, P_W2, P_W3, P_W4, P_GATE, P_OUT, P_DBG, P_WS = [16 + 2 * i for i in range(13)]

def load_args(g):
    g.i("s_load_dwordx16", S(16, 16), S(0, 2), "0")
    g.i("s_load_dwordx8", S(32, 8), S(0, 2), "64")
    g.i("s_load_dwordx2", S(40, 2), S(0, 2), "96")

def srd(g, d, p, off, size):
    if off:
        g.i("s_add_u32", S(d), S(p), hex(off))
        g.i("s_addc_u32", S(d + 1), S(p + 1), "0")
    else:
        g.i("s_mov_b32", S(d), S(p))
        g.i("s_mov_b32", S(d + 1), S(p + 1))
    g.i("s_mov_b32", S(d + 2), hex(size))
    g.i("s_mov_b32", S(d + 3), "0x20000")

def kernel_begin(g, name):
    g.reset()
    g.raw(f".globl {name}")
    g.raw(".p2align 8")
    g.raw(f".type {name},@function")
    g.raw(f"{name}:")

def kernel_desc(name, nv, acc_off, ns=102):
    return f""".amdhsa_kernel {name}
  .amdhsa_next_free_vgpr {nv}
  .amdhsa_next_free_sgpr {ns}
  .amdhsa_accum_offset {acc_off}
  .amdhsa_group_segment_fixed_size 0
  .amdhsa_kernarg_size 104
  .amdhsa_user_sgpr_count 2
  .amdhsa_user_sgpr_kernarg_segment_ptr 1
  .amdhsa_system_sgpr_workgroup_id_x 1
.end_amdhsa_kernel
"""

def allreduce4(g, x, t, op="v_add_f32"):
    g.i("v_mov_b32", V(t), V(x))
    g.i("v_permlane32_swap_b32", V(t), V(x))
    g.i(op, V(x), V(x), V(t))
    g.i("v_mov_b32", V(t), V(x))
    g.i("v_permlane16_swap_b32", V(t), V(x))
    g.i(op, V(x), V(x), V(t))

def round_bf16(g, x):
    g.i("v_cvt_pk_bf16_f32", V(x), V(x), V(x))
    g.i("v_lshlrev_b32", V(x), "16", V(x))

MFMA = "v_mfma_f32_16x16x32_bf16"

PROF = False
WS_PROF = 64 << 20
sSTAMP = 70
def stamp(g, idx):
    if PROF:
        g.i("s_memrealtime" if idx == 0 else "s_memtime", S(sSTAMP + 2 * idx, 2))
        if idx == 0:
            g.i("s_memtime", S(sSTAMP + 2 * 1, 2))

def prof_store(g, kidx, n):
    if not PROF:
        return
    g.i("s_memrealtime", S(sSTAMP + 2 * n, 2))
    g.waitcnt(lg=0)
    g.i("v_mov_b32", "v3", S(sSTAMP + 2 * n))
    g.i("s_mov_b64", "exec", "-1")
    srd(g, 96, P_WS, WS_PROF, 16 << 20)
    g.i("s_lshl_b32", "s100", "s2", "2")
    g.i("s_add_u32", "s100", "s100", "s3")
    g.i("s_add_u32", "s100", "s100", str(kidx * 2048))
    g.i("s_lshl_b32", "s100", "s100", "6")
    g.i("v_mov_b32", "v1", "0")
    for i in range(n):
        g.i("v_mov_b32", "v2", S(sSTAMP + 2 * i))
        g.i("buffer_store_dword", "v2", "v1", S(96, 4), "s100", mod=f"offen offset:{4 * i}")
    g.i("buffer_store_dword", "v3", "v1", S(96, 4), "s100", mod=f"offen offset:60")

def prof_kernel(g, name, grids):
    kernel_begin(g, name)
    load_args(g)
    g.i("s_cmp_ge_u32", "s2", "1")
    g.branch("s_cbranch_scc1", name + "_end")
    g.waitcnt(lg=0)
    srd(g, 96, P_WS, WS_PROF, 16 << 20)
    g.i("s_sub_u32", "s6", S(P_DBG), "0")
    g.i("s_subb_u32", "s7", S(P_DBG + 1), "0")
    g.i("v_mov_b32", "v1", "0")
    g.i("buffer_load_dword", "v2", "v1", S(96, 4), "0", mod="offen")
    g.i("v_lshlrev_b32", "v3", "2", "v0")
    g.i("v_and_b32", "v4", "1", "v0")
    g.i("v_subrev_u32", "v4", "1", "v4")
    g.i("ds_write_b32", "v3", "v4")
    g.i("v_subrev_u32", "v2", "1000", "v2")
    g.waitcnt(lg=0)
    g.barrier()
    for k, n in enumerate(grids):
        for it in range(5):
            g.i("v_add_u32", "v5", str(256 * it), "v0")
            g.i("v_min_u32", "v5", str(4 * n - 1), "v5")
            g.i("v_lshlrev_b32", "v5", "6", "v5")
            g.i("v_add_u32", "v5", str(k * 2048 * 64), "v5")
            g.i("buffer_load_dword", "v6", "v5", S(96, 4), "0", mod="offen")
            g.i("buffer_load_dword", "v7", "v5", S(96, 4), "0", mod="offen offset:60")
            g.i("v_sub_u32", "v6", "v6", "v2")
            g.i("v_sub_u32", "v7", "v7", "v2")
            g.i("ds_min_u32", "v1", "v6", mod=f"offset:{16 * k}")
            g.i("ds_max_u32", "v1", "v6", mod=f"offset:{16 * k + 4}")
            g.i("ds_min_u32", "v1", "v7", mod=f"offset:{16 * k + 8}")
            g.i("ds_max_u32", "v1", "v7", mod=f"offset:{16 * k + 12}")
    g.waitcnt(lg=0)
    g.barrier()
    g.i("ds_read_b32", "v4", "v3")
    g.i("s_mov_b32", "s8", "s6"); g.i("s_mov_b32", "s9", "s7"); g.i("s_mov_b32", "s10", "64"); g.i("s_mov_b32", "s11", "0x20000")
    g.i("buffer_store_dword", "v4", "v3", "s[8:11]", "0", mod="offen")
    g.label(name + "_end")
    g.raw("    s_endpgm")
```

```python
import sys, importlib
sys.path.insert(0, "gen")
from common import *
import k1
HDR = open("gated_mix__linear_kernel_hedgehog__mixer_s_mlp__prompt.s.ref").read().split("; Override launch")[0]

def build(path, nk=4):
    g = Gen()
    kernels = []
    k1.k1(g, "k1_kernel"); kernels.append(("k1_kernel", 256, k1.K1_LDS, 512, 256))
    if nk >= 2:
        import k2
        k2.k2(g, "k2_kernel"); kernels.append(("k2_kernel", k2.GRID, k2.LDS, k2.NV, k2.ACCOFF))
    if nk >= 3:
        import k3
        k3.k3(g, "k3_kernel"); kernels.append(("k3_kernel", 256, k3.LDS, 512, 256))
    if nk >= 4:
        import k4
        k4.k4(g, "k4_kernel"); kernels.append(("k4_kernel", k4.GRID, k4.LDS, k4.NV, k4.ACCOFF))
    import common
    if common.PROF == 2:
        common.prof_kernel(g, "k9_kernel", [k[1] for k in kernels]); kernels.append(("k9_kernel", 1, 4096, 256, 256))
    s = HDR
    for n, grid, lds, nv, acc in kernels:
        s += f"; @launch kernel={n} grid=({grid},1,1) block=(256,1,1) lds={lds}\n"
    s += '.amdgcn_target "amdgcn-amd-amdhsa--gfx950"\n.text\n'
    s += g.text()
    s += '.section .rodata,"a"\n'
    for n, grid, lds, nv, acc in kernels:
        s += ".p2align 6\n" + kernel_desc(n, nv, acc)
    open(path, "w").write(s)

if __name__ == "__main__":
    nk = int(sys.argv[1]) if len(sys.argv) > 1 else 4
    path = sys.argv[2] if len(sys.argv) > 2 else "gated_mix__linear_kernel_hedgehog__mixer_s_mlp__prompt.s"
    if len(sys.argv) > 3:
        import common
        common.PROF = int(sys.argv[3])
    build(path, nk)
```

```python
import re

TRANS = ("v_exp_f32", "v_rcp_f32", "v_rsq_f32", "v_sqrt_f32", "v_log_f32")

def regs_of(op):
    op = op.strip()
    if op.startswith("-"):
        op = op[1:]
    if op.startswith("|") and op.endswith("|"):
        op = op[1:-1]
    m = re.fullmatch(r"([vas])\[(\d+):(\d+)\]", op)
    if m:
        return [f"{m.group(1)}{i}" for i in range(int(m.group(2)), int(m.group(3)) + 1)]
    m = re.fullmatch(r"([vas])(\d+)", op)
    if m:
        return [op]
    if op == "vcc":
        return ["vcc"]
    if op == "exec":
        return ["exec"]
    if op == "m0":
        return ["m0"]
    return []

def R(kind, base, n=1):
    return f"{kind}{base}" if n == 1 else f"{kind}[{base}:{base+n-1}]"
def V(b, n=1): return R("v", b, n)
def A(b, n=1): return R("a", b, n)
def S(b, n=1): return R("s", b, n)

import os
STORE_MOD = [os.environ.get("STORE_MOD", "")]

class Gen:
    def __init__(self):
        self.out = []
        self.reset()

    def reset(self):
        self.clock = 0
        self.wr = {}
        self.rdc = {}
        self.std = {}
        self.vmq = []
        self.lgq = []
        self.cond = None

    def snapshot(self):
        import copy
        return copy.deepcopy((self.clock, self.wr, self.rdc, self.std, self.vmq, self.lgq))

    def restore(self, snap):
        import copy
        (self.clock, self.wr, self.rdc, self.std, self.vmq, self.lgq) = copy.deepcopy(snap)

    def raw(self, text):
        self.out.append(text)

    def comment(self, text):
        self.out.append("; " + text)

    def _emit(self, text, states=1):
        self.out.append("    " + text)
        self.clock += states

    def nop(self, n):
        while n > 0:
            k = min(n, 8)
            self._emit(f"s_nop {k-1}", k)
            n -= k

    def waitcnt(self, vm=None, lg=None):
        parts = []
        if vm is not None:
            vm = min(vm, 63)
            if vm < len(self.vmq):
                parts.append(f"vmcnt({vm})")
                self.vmq = self.vmq[len(self.vmq) - vm:] if vm else []
        if lg is not None:
            if any(e[2] for e in self.lgq):
                lg = 0
            lg = min(lg, 15)
            if lg < len(self.lgq):
                parts.append(f"lgkmcnt({lg})")
                self.lgq = self.lgq[len(self.lgq) - lg:] if lg else []
        if parts:
            self._emit("s_waitcnt " + " ".join(parts))

    def wait_vm_tag(self, tag):
        idx = [i for i, e in enumerate(self.vmq) if e[0] == tag]
        if idx:
            self.waitcnt(vm=len(self.vmq) - 1 - idx[-1])

    def wait_lg_tag(self, tag):
        idx = [i for i, e in enumerate(self.lgq) if e[0] == tag]
        if idx:
            self.waitcnt(lg=len(self.lgq) - 1 - idx[-1])

    def wait_all(self):
        self.waitcnt(vm=0, lg=0)

    def barrier(self):
        self._emit("s_barrier")

    def flush_hazards(self):
        need = 0
        for r, (k, t) in self.wr.items():
            lat = {"mfma": 8, "valu": 2, "trans": 2, "dot": 3, "valu_s": 5, "salu_m0": 1}.get(k, 0)
            need = max(need, lat - (self.clock - t))
        for r, t in self.rdc.items():
            need = max(need, 3 - (self.clock - t))
        for r, t in self.std.items():
            need = max(need, 2 - (self.clock - t))
        if need > 0:
            self.nop(need)

    def label(self, name, flush=True):
        if flush:
            self.flush_hazards()
        self.out.append(f"{name}:")

    def branch(self, op, target, flush=True):
        if flush:
            self.flush_hazards()
        self._emit(f"{op} {target}")

    def cond_begin(self, op, target):
        self._emit(f"{op} {target}")
        self.cond = (self.clock, set(), target, len(self.vmq), len(self.lgq))

    def cond_end(self):
        t0, regs, target, nv, nl = self.cond
        assert nv == len(self.vmq) and nl == len(self.lgq), "waits/mem ops inside cond block"
        self.cond = None
        self.out.append(f"{target}:")
        self.clock = t0
        for r in regs:
            k, _ = self.wr[r]
            self.wr[r] = (k, t0)
        for r in list(self.rdc):
            self.rdc[r] = min(self.rdc[r], t0)

    def i(self, mn, *ops, mod="", tag=None):
        ops = [str(o) for o in ops]
        if mn.startswith("buffer_store") and STORE_MOD[0]:
            mod = mod + " " + STORE_MOD[0]
        is_mfma = mn.startswith("v_mfma")
        is_valu = mn.startswith("v_") and not is_mfma
        is_ds = mn.startswith("ds_")
        is_vm = mn.startswith("buffer_") or mn.startswith("global_")
        is_smem = mn.startswith("s_load") or mn.startswith("s_mem")
        is_salu = mn.startswith("s_") and not is_smem
        lds_dma = is_vm and re.search(r"\blds\b", mod) is not None
        is_store = ("store" in mn) or mn.startswith("ds_write") or (mn.startswith(("ds_add", "ds_min", "ds_max")) and "rtn" not in mn)
        dst, src = [], []
        if is_store or lds_dma or mn.startswith("s_cmp") or mn.startswith("s_bitcmp"):
            for o in ops: src += regs_of(o)
        elif "permlane" in mn and "swap" in mn:
            for o in ops:
                dst += regs_of(o); src += regs_of(o)
        else:
            dst = regs_of(ops[0])
            for o in ops[1:]: src += regs_of(o)
            if mn.startswith("v_fmac") or mn.startswith("v_dot2c") or mn.startswith("v_pk_fmac") or "dpp" in mod and False:
                src += dst
        if lds_dma:
            src.append("m0")
        is_dpp = ("permlane" in mn) or ("row_" in mod) or ("quad_perm" in mod) or ("dpp" in mn)
        touched = set(dst) | set(src)
        need_vm = None
        for k, e in enumerate(self.vmq):
            if e[1] & touched:
                need_vm = len(self.vmq) - 1 - k
        need_lg = None
        for k, e in enumerate(self.lgq):
            if e[1] & touched:
                need_lg = len(self.lgq) - 1 - k
        if need_vm is not None or need_lg is not None:
            assert self.cond is None, f"wait needed inside cond block: {mn} {ops}"
            self.waitcnt(vm=need_vm, lg=need_lg)
        need = 0
        def req(r, lat):
            nonlocal need
            k, t = self.wr[r]
            need = max(need, lat - (self.clock - t))
        srcC = regs_of(ops[3]) if is_mfma else []
        for r in src:
            if r not in self.wr: continue
            k, t = self.wr[r]
            if k == "mfma":
                if is_mfma and r in srcC and r not in regs_of(ops[1]) + regs_of(ops[2]):
                    if regs_of(ops[3]) != self.wr_grp.get(r):
                        req(r, 8)
                else:
                    req(r, 8)
            elif k in ("valu", "trans", "dot"):
                if is_mfma: req(r, 2)
                if is_dpp: req(r, 2)
                if mn.startswith("v_readfirstlane") or mn.startswith("v_readlane"): req(r, 1)
                if k == "trans" and (is_valu or is_mfma): req(r, 1)
                if k == "trans" and (is_vm or is_ds): req(r, 1)
                if k == "dot":
                    same_chain = (self.wr_op.get(r) == mn and len(ops) >= 4 and r in regs_of(ops[3]) and r not in regs_of(ops[1]) + regs_of(ops[2]))
                    if not same_chain: req(r, 3)
            elif k == "valu_s":
                if is_vm: req(r, 5)
                elif is_valu or is_mfma: req(r, 2)
                elif is_salu: req(r, 1)
            elif k == "salu_m0":
                if lds_dma: req(r, 1)
        for r in dst:
            if r in self.wr and self.wr[r][0] == "mfma" and not (is_mfma and r in srcC):
                req(r, 8)
            if r in self.wr and self.wr[r][0] == "dot" and not is_vm and not is_ds and not (self.wr_op.get(r) == mn):
                req(r, 3)
            if is_valu and r in self.rdc:
                need = max(need, 3 - (self.clock - self.rdc[r]))
            if (is_valu or is_mfma) and r in self.std:
                need = max(need, 2 - (self.clock - self.std[r]))
        if need > 0:
            self.nop(need)
        text = mn + " " + ", ".join(ops) + ((" " + mod) if mod else "")
        self._emit(text)
        t = self.clock
        if is_mfma:
            for r in dst:
                self.wr[r] = ("mfma", t); self.wr_grp[r] = dst
            for r in srcC:
                if r not in dst: self.rdc[r] = t
        elif is_valu:
            kind = "trans" if mn in TRANS else ("dot" if mn.startswith("v_dot") else "valu")
            for r in dst:
                if r[0] in "va" and r not in ("vcc",):
                    self.wr[r] = (kind, t); self.wr_op[r] = mn
                else:
                    self.wr[r] = ("valu_s", t)
        elif is_salu:
            for r in dst:
                self.wr[r] = ("salu_m0" if r == "m0" else "salu", t)
        else:
            for r in dst:
                self.wr.pop(r, None)
        if self.cond is not None:
            assert not (is_vm or is_ds or is_smem)
            self.cond[1].update(r for r in dst if r in self.wr)
        if is_vm:
            self.vmq.append((tag, set(dst)))
            if is_store and ("x4" in mn or "x3" in mn):
                for r in regs_of(ops[0]): self.std[r] = t
        if is_ds:
            self.lgq.append((tag, set(dst), False))
        if is_smem:
            self.lgq.append((tag, set(dst), True))
    wr_grp = {}
    wr_op = {}

    def text(self):
        return "\n".join(self.out) + "\n"
```

```python
from common import *
import common
from k2 import lane_ids

LDS = 14 * 8192
GRID = 256
sWAVE, sRB, sCT, sKS, sWO, sXB, sA, sB, sM0 = 3, 6, 7, 8, 9, 10, 11, 12, 13
sT = 62
SRD_X, SRD_W, SRD_O, SRD_S, SRD_C = 44, 48, 52, 56, 88
vLANE, vM, vQ = 1, 3, 4
vDMA, vX0, vX1 = 5, 6, 7
vTA = 8
XF = lambda rt, u: 16 + (rt * 14 + u) * 4
ACC = lambda rt, t: 128 + (rt * 8 + t) * 4
CSV = 192
STV = 224
vSO = 232
WF = lambda buf, t: (buf * 8 + t) * 4
PDK = 5
PF4 = int(os.environ.get('PF4', '1'))
SRD_P4, SRD_PO = 92, 16

def step_loads(g, u):
    def d0():
        g.i("s_mul_i32", S(sA), S(sKS), str(32 * 3584))
        g.i("s_add_u32", S(sA), S(sA), S(sWO))
        g.i("s_lshl_b32", S(sB), S(sKS), "10")
        g.i("s_add_u32", S(sB), S(sB), S(sXB))
        g.i("s_add_u32", "m0", S(sM0), str(u * 8192))
        g.i("s_add_u32", S(sKS), S(sKS), "1")
        g.i("buffer_load_dwordx4", V(vDMA), S(SRD_W, 4), S(sA), mod="offen lds", tag=f"k{u}")
        g.i("s_cmp_eq_u32", S(sKS), "14")
        g.i("s_cselect_b32", S(sKS), "0", S(sKS))
    def d1():
        g.i("s_add_u32", "m0", "m0", "1024")
        g.i("s_add_u32", S(sA), S(sA), str(4 * 3584))
        g.i("buffer_load_dwordx4", V(vDMA), S(SRD_W, 4), S(sA), mod="offen lds", tag=f"k{u}")
    def x0():
        g.i("buffer_load_dwordx4", V(XF(0, u), 4), V(vX0), S(SRD_X, 4), S(sB), mod="offen", tag=f"k{u}")
    def x1():
        g.i("buffer_load_dwordx4", V(XF(1, u), 4), V(vX1), S(SRD_X, 4), S(sB), mod="offen", tag=f"k{u}")
    return [d0, d1, x0, x1]

def w_reads(u):
    u0 = u if u < 7 else u - 7
    return [("ds_read_b64_tr_b16", A(WF(u & 1, t) + 2 * hf, 2), V(vTA + t), f"offset:{u0 * 8192 + hf * 1024}")
            for t in range(8) for hf in range(2)]

def k3(g, name):
    kernel_begin(g, name)
    END = name + "_end"
    load_args(g)
    g.i("s_cmp_ge_u32", "s2", str(GRID))
    g.branch("s_cbranch_scc1", END)
    stamp(g, 0)
    lane_ids(g)
    g.i("s_cmp_ge_u32", "s2", "224")
    g.branch("s_cbranch_scc1", name + "_o")
    snap_o = g.snapshot()
    g.i("s_and_b32", "s4", "s2", "7")
    g.i("s_lshr_b32", "s5", "s2", "3")
    g.i("s_mul_i32", S(sT), "s5", "37")
    g.i("s_lshr_b32", S(sT), S(sT), "8")
    g.i("s_mul_i32", S(sT + 1), S(sT), "7")
    g.i("s_sub_u32", S(sT + 1), "s5", S(sT + 1))
    g.i("s_lshr_b32", S(sRB), "s4", "1")
    g.i("s_lshl_b32", S(sRB), S(sRB), "2")
    g.i("s_add_u32", S(sRB), S(sRB), S(sT))
    g.i("s_and_b32", S(sCT), "s4", "1")
    g.i("s_mul_i32", S(sCT), S(sCT), "7")
    g.i("s_add_u32", S(sCT), S(sCT), S(sT + 1))
    g.i("s_lshl_b32", S(sKS), S(sT + 1), "1")
    g.i("s_mul_i32", S(sT + 2), S(sT), "3")
    g.i("s_add_u32", S(sKS), S(sKS), S(sT + 2))
    g.i("s_sub_u32", S(sT + 2), S(sKS), "14")
    g.i("s_cmp_ge_u32", S(sKS), "14")
    g.i("s_cselect_b32", S(sKS), S(sT + 2), S(sKS))
    g.i("s_mul_i32", S(sWO), S(sWAVE), str(8 * 3584))
    g.i("s_lshl_b32", S(sM0), S(sWAVE), "11")
    g.i("s_lshl_b32", S(sT + 3), S(sRB), "3")
    g.i("s_lshl_b32", S(sT + 4), S(sWAVE), "1")
    g.i("s_add_u32", S(sT + 3), S(sT + 3), S(sT + 4))
    g.i("s_mul_i32", S(sXB), S(sT + 3), "14336")
    g.i("s_and_b32", S(sT + 4), S(sWAVE), "1")
    g.i("v_lshl_add_u32", V(8), V(vQ), "1", S(sT + 4))
    g.i("v_lshrrev_b32", V(9), "1", V(vM))
    g.i("v_xor_b32", V(8), V(8), V(9))
    g.i("v_and_b32", V(9), "1", V(vM))
    g.i("v_lshlrev_b32", V(9), "4", V(9))
    g.i("v_lshl_add_u32", V(8), V(8), "5", V(9))
    g.i("v_mul_u32_u24", V(9), "3584", V(vQ))
    g.i("s_lshl_b32", S(sT + 4), S(sCT), "8")
    g.i("v_add3_u32", V(vDMA), V(8), V(9), S(sT + 4))
    g.i("v_lshlrev_b32", V(vX0), "4", V(vLANE))
    g.i("v_add_u32", V(vX1), "14336", V(vX0))
    g.waitcnt(lg=0)
    srd(g, SRD_W, P_W3, 0, 448 * 3584)
    srd(g, SRD_X, P_WS, WS_X1, 2048 * 896)
    for u in range(PDK):
        for f in step_loads(g, u): f()
    srd(g, SRD_O, P_WS, WS_H3, 2048 * 3584)
    srd(g, SRD_S, P_WS, WS_ST, 2048 * 128)
    srd(g, SRD_C, P_WS, WS_CS3, 1792 * 4)
    T0, T1, T2 = 240, 241, 242
    g.i("v_bfe_u32", V(T0), V(vLANE), "2", "2")
    g.i("v_and_b32", V(T1), "1", V(vQ))
    g.i("v_lshl_add_u32", V(T1), V(T0), "1", V(T1))
    g.i("v_lshlrev_b32", V(T2), "11", V(vQ))
    g.i("v_lshl_add_u32", V(T2), V(T0), "8", V(T2))
    g.i("v_and_b32", V(T0), "3", V(vLANE))
    g.i("v_lshl_add_u32", V(T2), V(T0), "3", V(T2))
    for t in range(8):
        g.i("v_xor_b32", V(T0), str(t), V(T1))
        g.i("v_lshl_add_u32", V(vTA + t), V(T0), "5", V(T2))
    g.i("s_lshl_b32", S(sT + 4), S(sT + 3), "11")
    g.i("v_lshlrev_b32", V(T0), "7", V(vM))
    g.i("v_lshl_add_u32", V(T0), V(vQ), "4", V(T0))
    g.i("v_add_u32", V(vSO), S(sT + 4), V(T0))
    g.i("s_lshl_b32", S(sT + 4), S(sCT), "9")
    g.i("v_lshl_add_u32", V(vSO + 1), V(vQ), "4", S(sT + 4))
    g.i("s_mul_i32", S(14), S(sT + 3), "57344")
    g.i("s_lshl_b32", S(sT + 4), S(sCT), "12")
    g.i("s_add_u32", S(14), S(14), S(sT + 4))
    g.i("s_add_u32", S(15), S(14), "57344")
    stamp(g, 2)
    g.wait_vm_tag("k1")
    g.barrier()
    stamp(g, 3)
    for r in w_reads(0):
        g.i(r[0], r[1], r[2], mod=r[3])
    extra = []
    for rt in range(2):
        extra.append(lambda rt=rt: g.i("buffer_load_dwordx4", V(STV + 4 * rt, 4), V(vSO), S(SRD_S, 4), "0", mod=f"offen offset:{2048 * rt}"))
    for t in range(8):
        extra.append(lambda t=t: g.i("buffer_load_dwordx4", V(CSV + 4 * t, 4), V(vSO + 1), S(SRD_C, 4), "0", mod=f"offen offset:{64 * t}"))
    if PF4:
        srd(g, SRD_P4, P_W4, 0, 1792 * 896)
        srd(g, SRD_PO, P_WO, 0, 448 * 896)
        g.i("s_lshl_b32", S(sT + 4), "s5", "2")
        g.i("s_add_u32", S(sT + 4), S(sT + 4), S(sWAVE))
        g.i("s_mul_i32", S(68), S(sT + 4), str(14 * 1024))
        g.i("s_mul_i32", S(69), S(sT + 4), str(3584))
        for j in range(14):
            extra.append(lambda j=j: g.i("buffer_load_dwordx4", A(64 + 4 * j, 4), V(vX0 if j < 4 else 243 + j // 4), S(SRD_P4, 4), S(68), mod=f"offen offset:{1024 * (j & 3)}"))
        for j in range(4):
            extra.append(lambda j=j: g.i("buffer_load_dwordx4", A(120 + 4 * j, 4), V(vX0), S(SRD_PO, 4), S(69), mod=f"offen offset:{1024 * j}"))
        for j in range(1, 4):
            g.i("v_add_u32", V(243 + j), str(4096 * j), V(vX0))
    for u in range(14):
        buf = u & 1
        mf = [(t, rt) for t in range(8) for rt in range(2)]
        rd = w_reads(u + 1) if u < 13 else []
        sp = 4
        if u + PDK < 14:
            lds = step_loads(g, u + PDK)
        else:
            lds = extra[:8]; extra = extra[8:]; sp = 2
        newstage = u < 13 and (u & 1) == 1
        nfirst = 6 if newstage else 0
        for n, (t, rt) in enumerate(mf):
            if newstage and n == nfirst:
                g.wait_vm_tag(f"k{u + 2}")
                g.barrier()
                if u in (5, 11): stamp(g, 4 if u == 5 else 5)
            if u == 6 and n == 0:
                pass
            g.i(MFMA, V(ACC(rt, t), 4), A(WF(buf, t), 4), V(XF(rt, u), 4), "0" if u == 0 else V(ACC(rt, t), 4))
            if u == 6 and n < 8:
                g.i("v_add_u32", V(vTA + n), str(7 * 8192), V(vTA + n))
            lo = 8 if u == 6 else nfirst
            if n >= lo:
                left = len(mf) - n
                k = -(-len(rd) // left)
                for r in rd[:k]:
                    g.i(r[0], r[1], r[2], mod=r[3])
                rd = rd[k:]
            if lds and n % sp == 1:
                lds.pop(0)()
        assert not lds
    stamp(g, 6)
    MEAN, C0, C1, SD = 16, 20, 24, 28
    g.i("v_and_b32", V(T0), "1", V(vQ))
    g.i("v_cmp_eq_u32", "vcc", "1", V(T0))
    for rt in range(2):
        s = STV + 4 * rt
        g.i("v_cndmask_b32", V(s + 3), V(s + 3), "0", "vcc")
        g.i("v_add_f32", V(s), V(s), V(s + 1))
        g.i("v_add_f32", V(s + 2), V(s + 2), V(s + 3))
        g.i("v_add_f32", V(s), V(s), V(s + 2))
        g.i("v_mov_b32", V(s + 1), V(s))
        g.i("v_permlane16_swap_b32", V(s + 1), V(s))
        g.i("v_add_f32", V(s), V(s), V(s + 1))
        g.i("v_mov_b32", V(s + 1), V(s))
        g.i("v_permlane32_swap_b32", V(s), V(s + 1))
        q2 = s + 1
        g.i("v_mul_f32", V(s), f32(1.0 / 448), V(s))
        g.i("v_mul_f32", V(q2), f32(1.0 / 448), V(q2))
        g.i("v_fma_f32", V(q2), "-" + V(s), V(s), V(q2))
        g.i("v_max_f32", V(q2), "0", V(q2))
        round_bf16(g, s)
        round_bf16(g, q2)
        g.i("v_add_f32", V(q2), f32(1e-5), V(q2))
        round_bf16(g, q2)
        g.i("v_sqrt_f32", V(q2), V(q2))
        round_bf16(g, q2)
        rs = s + 2
        g.i("v_rcp_f32", V(rs), V(q2))
        g.i("v_mul_f32", V(MEAN + 2 * rt), "-1.0", V(s))
        g.i("v_mov_b32", V(MEAN + 2 * rt + 1), V(MEAN + 2 * rt))
        g.i("v_mov_b32", V(SD + 2 * rt), V(q2))
        g.i("v_mov_b32", V(SD + 2 * rt + 1), V(q2))
        g.i("v_mul_f32", V(C0 + 2 * rt), f32(GC0), V(rs))
        g.i("v_mov_b32", V(C0 + 2 * rt + 1), V(C0 + 2 * rt))
        g.i("v_mul_f32", V(s + 3), V(rs), V(rs))
        g.i("v_mul_f32", V(s + 3), V(s + 3), V(rs))
        g.i("v_mul_f32", V(C1 + 2 * rt), f32(GC1), V(s + 3))
        g.i("v_mov_b32", V(C1 + 2 * rt + 1), V(C1 + 2 * rt))
    for rt in range(2):
        U, Z, PK = 32, 64, 96 + 16 * rt
        for p in range(16):
            a = V(ACC(rt, 0) + 2 * p, 2)
            g.i("v_pk_fma_f32", V(U + 2 * p, 2), V(CSV + 2 * p, 2), V(MEAN + 2 * rt, 2), a)
        for p in range(16):
            g.i("v_pk_mul_f32", V(Z + 2 * p, 2), V(U + 2 * p, 2), V(U + 2 * p, 2))
        for p in range(16):
            g.i("v_pk_fma_f32", V(Z + 2 * p, 2), V(Z + 2 * p, 2), V(C1 + 2 * rt, 2), V(C0 + 2 * rt, 2))
        for p in range(16):
            g.i("v_pk_mul_f32", V(Z + 2 * p, 2), V(Z + 2 * p, 2), V(U + 2 * p, 2))
        for e in range(32):
            g.i("v_exp_f32", V(Z + e), V(Z + e))
        for p in range(16):
            g.i("v_pk_fma_f32", V(Z + 2 * p, 2), V(Z + 2 * p, 2), V(SD + 2 * rt, 2), V(SD + 2 * rt, 2))
        for e in range(32):
            g.i("v_rcp_f32", V(Z + e), V(Z + e))
        for p in range(16):
            g.i("v_pk_mul_f32", V(U + 2 * p, 2), V(U + 2 * p, 2), V(Z + 2 * p, 2))
        for p in range(16):
            g.i("v_cvt_pk_bf16_f32", V(PK + p), V(U + 2 * p), V(U + 2 * p + 1))
        for pp in range(4):
            g.i("buffer_store_dwordx4", V(PK + 4 * pp, 4), V(vX0), S(SRD_O, 4), S(14 + rt), mod=f"offen offset:{1024 * pp}")
    assert not extra
    stamp(g, 7); prof_store(g, 2, 8)
    g.waitcnt(vm=0)
    g.raw("    s_endpgm")
    g.restore(snap_o)
    g.label(name + "_o")
    SRD_Q, SRD_KV, SRD_OO = 44, 48, 52
    g.i("s_sub_u32", S(sT), "s2", "224")
    g.i("s_and_b32", S(sT + 1), S(sT), "3")
    g.i("s_lshl_b32", S(sT + 1), S(sT + 1), "2")
    g.i("s_add_u32", S(sT + 1), S(sT + 1), S(sWAVE))
    g.i("s_lshr_b32", S(sT + 2), S(sT), "2")
    g.i("s_lshl_b32", S(sT + 2), S(sT + 2), "8")
    g.i("s_add_u32", S(sT + 2), S(sT + 2), S(sT + 1))
    g.i("s_lshl_b32", S(8), S(sT + 1), "12")
    g.i("s_lshl_b32", S(9), S(sT + 2), "11")
    g.i("s_lshl_b32", S(10), S(sT + 2), "10")
    g.i("v_lshlrev_b32", V(5), "4", V(vLANE))
    g.i("v_mov_b32", V(7), "0x7f000000")
    g.i("v_cmp_eq_u32", "vcc", "3", V(vQ))
    g.i("v_cndmask_b32", V(6), V(5), V(7), "vcc")
    g.waitcnt(lg=0)
    srd(g, SRD_Q, P_WS, WS_PHIQ, 4 << 20)
    srd(g, SRD_KV, P_WS, WS_KVF, 64 << 10)
    srd(g, SRD_OO, P_WS, WS_O, 2 << 20)
    KF = lambda td, p: 16 + 4 * (2 * td + p)
    QF = lambda i, p: 32 + 4 * (2 * i + p)
    for td in range(2):
        for p in range(2):
            g.i("buffer_load_dwordx4", V(KF(td, p), 4), V(5), S(SRD_KV, 4), S(8), mod=f"offen offset:{1024 * (2 * td + p)}")
    for i in range(16):
        g.i("buffer_load_dwordx4", V(QF(i, 0), 4), V(5), S(SRD_Q, 4), S(9), mod="offen")
        g.i("buffer_load_dwordx4", V(QF(i, 1), 4), V(6), S(SRD_Q, 4), S(9), mod="offen offset:1024")
        if i < 15:
            g.i("s_add_u32", S(9), S(9), str(16 * 2048))
    for i in range(16):
        b = 160 + 8 * (i & 3)
        for td in range(2):
            for p in range(2):
                d = V(b + 4 * td, 4)
                g.i(MFMA, d, V(KF(td, p), 4), V(QF(i, p), 4), "0" if p == 0 else d)
        if (i & 3) != 3: continue
        for ii in range(i - 3, i + 1):
            b = 160 + 8 * (ii & 3)
            den = b + 7
            round_bf16(g, den)
            g.i("v_add_f32", V(den), f32(1e-6), V(den))
            round_bf16(g, den)
            g.i("v_rcp_f32", V(den), V(den))
            PKO = 192 + 4 * (ii & 7)
            for j in range(4):
                g.i("v_cvt_pk_bf16_f32", V(PKO + j), V(b + 2 * j), V(b + 2 * j + 1))
            for j in range(4):
                g.i("v_lshlrev_b32", V(b + 2 * j), "16", V(PKO + j))
                if j < 3:
                    g.i("v_and_b32", V(b + 2 * j + 1), "0xffff0000", V(PKO + j))
            for j in range(7):
                g.i("v_mul_f32", V(b + j), V(b + j), V(den))
            g.i("v_mov_b32", V(den), "0")
            for j in range(4):
                g.i("v_cvt_pk_bf16_f32", V(PKO + j), V(b + 2 * j), V(b + 2 * j + 1))
            g.i("buffer_store_dwordx4", V(PKO, 4), V(5), S(SRD_OO, 4), S(10), mod="offen")
            if ii < 15:
                g.i("s_add_u32", S(10), S(10), str(16 * 1024))
    stamp(g, 2); prof_store(g, 2, 3)
    g.label(END)
    g.raw("    s_endpgm")
```
